```python
import torch

def _softmax(x, axis=-1):
    return torch.softmax(x, dim=axis)

def _gelu(x):
    return torch.nn.functional.gelu(x, approximate='tanh')

def _silu(x):
    return torch.nn.functional.silu(x)

def _sigmoid(x):
    return torch.sigmoid(x)

def _layernorm(x, axis=-1, eps=1e-05):
    m = x.mean(dim=axis, keepdim=True)
    v = x.var(dim=axis, keepdim=True, unbiased=False)
    return (x - m) / torch.sqrt(v + eps)

def _scatter_add(tgt, idx, src, axis=0):
    return tgt.clone().index_add_(axis, idx, src)

def _segment_sum(src, seg, n):
    out = torch.zeros((n,) + src.shape[1:], dtype=src.dtype)
    return out.index_add_(0, seg, src)

def _pad(x, pw):
    flat = tuple((v for pair in reversed(pw) for v in pair))
    return torch.nn.functional.pad(x, flat)
kernel_name = 'adaLN_cond__sliding_block__dense_activation_squared_relu__prompt'

def setup_inputs():

    _w = lambda a: (lambda t: t.to(torch.bfloat16) if t.is_floating_point() else t)(torch.as_tensor(a))

    def _A_setup():
        B, S, D = (1, 2048, 448)
        return {'x': _w((lambda *s: torch.randn(*s, dtype=torch.bfloat16) * 0.05)(B, S, D)), 'wqkv': _w((lambda *s: torch.randn(*s, dtype=torch.bfloat16) * 0.05)(D, 3 * D)), 'wo': _w((lambda *s: torch.randn(*s, dtype=torch.bfloat16) * 0.05)(D, D))}
    _A_in = _A_setup()

    def _B_setup():
        B, S, D, F = (1, 2048, 448, 1792)
        return {'x': _w((lambda *s: torch.randn(*s, dtype=torch.bfloat16) * 0.05)(B, S, D)), 'w1': _w((lambda *s: torch.randn(*s, dtype=torch.bfloat16) * 0.05)(D, F)), 'b1': _w((lambda *s: torch.randn(*s, dtype=torch.bfloat16) * 0.4)(F)), 'w2': _w((lambda *s: torch.randn(*s, dtype=torch.bfloat16) * 0.05)(F, D)), 'b2': _w((lambda *s: torch.randn(*s, dtype=torch.bfloat16) * 3.2)(D))}
    _B_in = _B_setup()
    return {'A_x': _A_in['x'], 'A_wqkv': _A_in['wqkv'], 'A_wo': _A_in['wo'], 'B_x': _B_in['x'], 'B_w1': _B_in['w1'], 'B_b1': _B_in['b1'], 'B_w2': _B_in['w2'], 'B_b2': _B_in['b2'], 'c': _w((lambda *s: torch.randn(*s, dtype=torch.bfloat16) * 0.1)(1, 448) * 8.0), 'w_mod': _w((lambda *s: torch.randn(*s, dtype=torch.bfloat16) * 0.1)(448, 6 * 448) * 448 ** (-0.5) * 8.0)}

def reference(A_x, A_wqkv, A_wo, B_x, B_w1, B_b1, B_w2, B_b2, c, w_mod):

    def _A_ref(x, wqkv, wo):
        B, S, D = x.shape
        H = 16
        Dh = D // H
        W = 256
        qkv = (lambda x, *d: x.permute(*d))((x @ wqkv).reshape(B, S, 3, H, Dh), 2, 0, 3, 1, 4)
        q, k, v = (qkv[0], qkv[1], qkv[2])
        scores = torch.einsum('bhqd,bhkd->bhqk', q, k) * Dh ** (-0.5)
        idx = torch.arange(S)
        mask = (idx[:, None] - idx[None, :] >= 0) & (idx[:, None] - idx[None, :] < W)
        scores = torch.where(mask[None, None], scores, -1000000000.0)
        p = _softmax(scores, axis=-1)
        o = torch.einsum('bhqk,bhkd->bhqd', p, v)
        return (lambda x, *d: x.permute(*d))(o, 0, 2, 1, 3).reshape(B, S, D) @ wo

    def _B_ref(x, w1, b1, w2, b2):
        h = torch.einsum('bsd,df->bsf', x, w1) + b1
        zero = torch.zeros_like(h)
        r = torch.where(h > zero, h, zero)
        h = r * r
        out = torch.einsum('bsf,fd->bsd', h, w2) + b2
        return out
    x = A_x
    mod = (_silu(c) @ w_mod).reshape(c.shape[0], 6, 1, -1)
    sa, ca, ga, sb, cb, gb = (mod[:, 0].clone(), mod[:, 1].clone(), mod[:, 2].clone(), mod[:, 3].clone(), mod[:, 4].clone(), mod[:, 5].clone())
    h = _layernorm(x, axis=-1) * (1 + ca) + sa
    x = x + ga * _A_ref(h, A_wqkv, A_wo)
    h = _layernorm(x, axis=-1) * (1 + cb) + sb
    x = x + gb * _B_ref(h, B_w1, B_b1, B_w2, B_b2)
    return x
```

```python
KNAME = "adaLN_cond__sliding_block__dense_activation_squared_relu__prompt"

class Asm:
    def __init__(self):
        self.L = []
    def __call__(self, s):
        for l in s.strip("\n").split("\n"):
            self.L.append(l.strip() if not l.strip().endswith(":") else l.strip())
    def label(self, n): self.L.append(n + ":")
    def text(self): return "\n".join(("" if l.endswith(":") else "  ") + l for l in self.L) + "\n"

def vr(a, n=1, p="v"):
    return f"{p}{a}" if n == 1 else f"{p}[{a}:{a+n-1}]"
def sr(a, n=1): return vr(a, n, "s")
def ar(a, n=1): return vr(a, n, "a")

def kernel_text(name, body, vgpr=256, agpr=0, sgpr=102):
    acc = (vgpr + 3) // 4 * 4
    nfv = acc + agpr if agpr else vgpr
    code = f""".text
.globl {name}
.p2align 8
.type {name},@function
{name}:
{body}"""
    kd = f""".amdhsa_kernel {name}
  .amdhsa_next_free_vgpr {nfv}
  .amdhsa_next_free_sgpr {sgpr}
  .amdhsa_accum_offset {acc}
  .amdhsa_group_segment_fixed_size 0
  .amdhsa_kernarg_size 104
  .amdhsa_user_sgpr_count 2
  .amdhsa_user_sgpr_kernarg_segment_ptr 1
  .amdhsa_system_sgpr_workgroup_id_x 1
  .amdhsa_float_denorm_mode_32 3
.end_amdhsa_kernel
"""
    return code, kd

def file_text(launch_lines, kernels, header=""):
    s = header
    for l in launch_lines: s += l + "\n"
    s += '.amdgcn_target "amdgcn-amd-amdhsa--gfx950"\n'
    for code, kd in kernels: s += code
    s += '.section .rodata,"a"\n'
    for code, kd in kernels: s += ".p2align 6\n" + kd
    return s
```

```python
import re
from asmlib import KNAME, kernel_text, file_text

TRANS = ("v_exp_f32", "v_log_f32", "v_rcp_f32", "v_rsq_f32", "v_sqrt_f32", "v_sin_f32", "v_cos_f32", "v_rcp_iflag_f32")
_reg = re.compile(r"^-?\|?(?:abs\()?([vas])(?:(\d+)|\[(\d+):(\d+)\])\)?\|?$")

def regs_of(tok):
    tok = tok.strip()
    if tok in ("vcc",): return {("s", "vcc")}
    if tok in ("vcc_lo", "vcc_hi"): return {("s", "vcc")}
    if tok in ("exec", "exec_lo", "exec_hi"): return {("s", "exec")}
    if tok == "m0": return {("s", "m0")}
    m = _reg.match(tok)
    if not m: return set()
    if m.group(2) is not None: return {(m.group(1), int(m.group(2)))}
    return {(m.group(1), i) for i in range(int(m.group(3)), int(m.group(4)) + 1)}

class I:
    __slots__ = ("text", "op", "kind", "defs", "uses", "tok", "ops", "C", "AB", "passes", "data", "dpp", "meta")
    def __init__(self, text, tok=None):
        self.text = text; self.tok = tok; self.meta = None
        t = text.split(";")[0].strip()
        self.defs = set(); self.uses = set(); self.C = set(); self.AB = set(); self.passes = 0; self.data = set(); self.dpp = False
        if t.endswith(":"):
            self.op = "label"; self.kind = "label"; self.ops = []; return
        if t.startswith("."):
            self.op = "dir"; self.kind = "dir"; self.ops = []; return
        parts = t.split(None, 1)
        op = parts[0]; rest = parts[1] if len(parts) > 1 else ""
        self.op = op
        ops = [x.strip() for x in rest.split(",")] if rest else []
        mods = ""
        if ops:
            flat = []
            for k, x in enumerate(ops):
                w = x.split(None, 1)
                flat.append(w[0] if w else "")
                if len(w) > 1:
                    mods = w[1] + "," + ",".join(ops[k + 1:])
                    break
            ops = flat
        self.ops = ops
        R = [regs_of(x) for x in ops]
        U = lambda lst: set().union(*lst) if lst else set()
        base = re.sub(r"_(e32|e64|dpp|sdwa)$", "", op)
        if op.startswith("v_mfma"):
            self.kind = "mfma"; self.defs = R[0]; self.AB = R[1] | R[2]; self.C = R[3]; self.uses = self.AB | self.C
            self.passes = 8 if "32x32x16" in op else 4 if "16x16x32" in op else None
            assert self.passes
        elif op.startswith("v_"):
            self.kind = "trans" if base in TRANS else "valu"
            self.dpp = op.endswith("_dpp")
            if op.startswith("v_permlane") and "swap" in op:
                self.defs = R[0] | R[1]; self.uses = R[0] | R[1]
            elif op == "v_nop": pass
            else:
                self.defs = set(R[0]); self.uses = U(R[1:])
                if base in ("v_fmac_f32", "v_dot2c_f32_bf16", "v_writelane_b32") or self.dpp or op.endswith("_sdwa"): self.uses |= R[0]
                if base.startswith("v_cmpx"): self.defs |= {("s", "exec")}
                assert "_co_" not in op, "carry ops unsupported"
        elif op.startswith("buffer_load") or op.startswith("global_load"):
            if re.search(r"\blds\b", mods):
                self.kind = "dma"; self.uses = U(R) | {("s", "m0")}
            else:
                self.kind = "vld"; self.defs = R[0]; self.uses = U(R[1:])
        elif op.startswith("buffer_store"):
            self.kind = "vst"; self.uses = U(R)
            if "x4" in op or "x3" in op: self.data = R[0]
        elif op in ("buffer_inv", "buffer_wbl2"):
            self.kind = "vst"; self.ops = []
        elif op.startswith("ds_read") or op.startswith("ds_bpermute"):
            self.kind = "dsr"; self.defs = R[0]; self.uses = U(R[1:])
        elif op.startswith("ds_write"):
            self.kind = "dsw"; self.uses = U(R)
        elif op.startswith(("s_load", "s_buffer_load")) or op in ("s_memtime", "s_memrealtime"):
            self.kind = "smem"; self.defs = R[0]; self.uses = U(R[1:])
        elif op == "s_waitcnt":
            self.kind = "wait"
        elif op == "s_nop":
            self.kind = "nop"
        elif op.startswith("s_cbranch") or op in ("s_branch", "s_endpgm", "s_barrier", "s_sleep", "s_setprio"):
            self.kind = "ctl"
            if "vcc" in op: self.uses = {("s", "vcc")}
        elif op.startswith("s_cmp") or op.startswith("s_bitcmp"):
            self.kind = "salu"; self.uses = U(R)
        elif op.startswith("s_"):
            self.kind = "salu"; self.defs = set(R[0]) if R else set(); self.uses = U(R[1:])
            if "saveexec" in op: self.defs |= {("s", "exec")}; self.uses |= {("s", "exec")}
            if op in ("s_addk_i32", "s_mulk_i32"): self.uses |= R[0]
        else:
            raise ValueError("unknown instruction: " + text)

class Ctl:
    def __init__(self, what, arg=None): self.what = what; self.arg = arg

class Prog:
    def __init__(self):
        self.L = []
        self.ool = []
        self.nlab = 0
    def __call__(self, s, tok=None):
        for l in s.strip("\n").split("\n"):
            l = l.strip()
            if not l or l.startswith(";"): continue
            self.L.append(I(l, tok))
    def add(self, items):
        if not isinstance(items, (list, tuple)): items = [items]
        for x in items:
            if isinstance(x, str): self(x)
            elif isinstance(x, (list, tuple)): self.add(x)
            else: self.L.append(x)
    def label(self, n): self.L.append(I(n + ":"))
    def newlab(self, p="L"):
        self.nlab += 1; return f"{p}_{self.nlab}"
    def wait_tok(self, *toks): self.L.append(Ctl("wait_tok", set(toks)))
    def wait_lds(self): self.L.append(Ctl("wait_lds"))
    def wait_vm(self): self.L.append(Ctl("wait_vm"))
    def cond_begin(self): self.L.append(Ctl("cond_begin"))
    def cond_end(self): self.L.append(Ctl("cond_end"))

    def _waits(self):
        out = []; vm = []; lg = []
        cond = []; ncond = 0
        def cnt_after(q, i):
            return sum(1 for e in q[i + 1:] if e["cond"] is None or e["cond"] in cond)
        def emit(nv, nl):
            nonlocal vm, lg
            p = []
            if nv is not None: p.append(f"vmcnt({min(nv, 63)})")
            if nl is not None: p.append(f"lgkmcnt({min(nl, 15)})")
            if p:
                if out and out[-1].kind == "wait" and out[-1].meta == "auto":
                    old = dict(re.findall(r"(\w+)\((\d+)\)", out[-1].text)); out.pop()
                    for k_, n_ in re.findall(r"(\w+)\((\d+)\)", " ".join(p)): old[k_] = min(int(n_), int(old.get(k_, 99)))
                    p = [f"{k_}({n_})" for k_, n_ in old.items()]
                w_ = I("s_waitcnt " + " ".join(p)); w_.meta = "auto"; out.append(w_)
        def need(q, pred):
            idx = -1
            for i, e in enumerate(q):
                if pred(e): idx = i
            return idx
        def do_wait(iv, il):
            nonlocal vm, lg
            nv = nl = None
            if iv >= 0: nv = cnt_after(vm, iv); vm = vm[iv + 1:]
            if il >= 0:
                if any(e["smem"] for e in lg): nl = 0; lg = []
                else: nl = cnt_after(lg, il); lg = lg[il + 1:]
            emit(nv, nl)
        for x in self.L:
            if isinstance(x, Ctl):
                if x.what == "wait_tok":
                    do_wait(need(vm, lambda e: e["tok"] in x.arg), need(lg, lambda e: e["tok"] in x.arg))
                elif x.what == "wait_regs":
                    do_wait(need(vm, lambda e: e["regs"] & x.arg), need(lg, lambda e: e["regs"] & x.arg))
                elif x.what == "forget":
                    for e in vm:
                        if e["tok"] in x.arg: e["regs"] = set()
                elif x.what == "wait_lds": do_wait(-1, len(lg) - 1)
                elif x.what == "wait_vm": do_wait(len(vm) - 1, -1)
                elif x.what == "cond_begin":
                    ncond += 1; cond.append(ncond); self._snap = getattr(self, "_snap", []) + [(list(vm), list(lg))]
                elif x.what == "cond_end":
                    c = cond.pop(); sv, sl = self._snap.pop()
                    vm = [e for e in sv] + [e for e in vm if e not in sv]
                    lg = [e for e in sl] + [e for e in lg if e not in sl]
                continue
            if x.kind == "wait":
                m = re.search(r"vmcnt\((\d+)\)", x.text)
                if m and int(m.group(1)) == 0: vm = []
                m = re.search(r"lgkmcnt\((\d+)\)", x.text)
                if m and int(m.group(1)) == 0: lg = []
                out.append(x); continue
            touch = x.defs | x.uses
            if touch:
                same_v = x.kind == "vld"; same_l = x.kind == "dsr"
                iv = need(vm, lambda e: e["regs"] & (x.uses if same_v else touch))
                il = need(lg, lambda e: e["regs"] & (x.uses if ((same_l and not e["smem"]) or x.op == "s_buffer_load_dword") else touch))
                do_wait(iv, il)
            out.append(x)
            c = cond[-1] if cond else None
            if x.kind in ("vld", "vst", "dma"): vm.append(dict(regs=set(x.defs), tok=x.tok, cond=c, smem=False, id=len(out)))
            elif x.kind in ("dsr", "dsw"): lg.append(dict(regs=set(x.defs), tok=x.tok, cond=c, smem=False, id=len(out)))
            elif x.kind == "smem": lg.append(dict(regs=set(x.defs), tok=x.tok, cond=c, smem=True, id=len(out)))
        return out

    @staticmethod
    def _hazard(p, c):
        n = 0
        isv = lambda s: {r for r in s if r[0] in "va"}
        iss = lambda s: {r for r in s if r[0] == "s"}
        cval = c.kind in ("valu", "trans")
        cmem = c.kind in ("vld", "vst", "dma", "dsr", "dsw")
        if p.kind in ("valu", "trans"):
            pv = isv(p.defs); ps = iss(p.defs)
            if c.kind == "mfma" and pv & c.uses: n = max(n, 2)
            if c.kind == "mfma" and ("s", "exec") in ps: n = max(n, 4)
            if cval:
                if c.dpp and pv & c.uses: n = max(n, 2)
                if c.op.startswith("v_permlane") and pv & c.uses: n = max(n, 2)
                if c.op.startswith(("v_readlane", "v_readfirstlane")) and pv & c.uses: n = max(n, 1)
                if p.kind == "trans" and pv & c.uses: n = max(n, 1)
                if ps & c.uses: n = max(n, 4 if c.op.startswith(("v_readlane", "v_writelane")) else 2)
                if p.op.endswith("_sdwa") and pv & (c.uses | c.defs): n = max(n, 1)
                if p.op.startswith("v_dot") and pv & (c.uses | c.defs):
                    same = c.op == p.op and not (pv & set().union(*[regs_of(o) for o in (c.ops[1:3])]))
                    if not same: n = max(n, 3)
                if ("s", "exec") in ps: n = max(n, 5)
            if p.op.startswith("v_dot") and (cmem or c.kind == "mfma") and pv & c.uses: n = max(n, 3)
            if p.kind == "trans" and cmem and pv & c.uses: n = max(n, 1)
            if c.kind in ("vld", "vst", "dma") and ps & c.uses: n = max(n, 5)
            if c.kind in ("salu", "ctl", "smem") and ps & c.uses: n = max(n, 1 if c.kind != "ctl" else 5)
        elif p.kind == "mfma":
            big = p.passes == 8
            if c.kind == "mfma":
                if p.defs & c.AB: n = max(n, 12 if big else 8)
                if p.defs & c.C and not (p.defs == c.C and p.passes == c.passes): n = max(n, 10 if big else 6)
                if p.defs & c.defs and not (p.defs == c.defs and p.passes == c.passes) : n = max(n, 10 if big else 6)
            elif cval or cmem:
                if p.defs & (c.uses | c.defs): n = max(n, 12 if big else 8)
                if cval and p.C & c.defs: n = max(n, 7 if big else 3)
        elif p.kind == "salu":
            if ("s", "m0") in p.defs and c.kind == "dma": n = max(n, 1)
        elif p.kind == "vst":
            if p.data & c.defs: n = max(n, 2 if cval else 1)
        return n

    def _nops(self, L):
        out = []
        for x in L:
            if x.kind in ("label", "dir"): out.append(x); continue
            dist = 0; need = 0
            for p in reversed(out):
                if p.kind in ("label", "dir"): continue
                if dist >= 12: break
                h = self._hazard(p, x)
                need = max(need, h - dist)
                dist += (int(p.ops[0]) + 1) if p.kind == "nop" else 1
            if need > 0: out.append(I(f"s_nop {need - 1}"))
            out.append(x)
        return out

    def finalize(self):
        L = self._nops(self._waits())
        self.final = L
        s = "\n".join(("" if x.kind == "label" else "  ") + x.text for x in L) + "\n"
        return s + "".join(self.ool)

def interleave(main, fill, per=None):
    out = []; n = len(main); m = len(fill); k = 0
    for i, x in enumerate(main):
        out.append(x)
        tgt = min(m, (i + 1) * per) if per is not None else (m * (i + 1)) // n
        while k < tgt: out.append(fill[k]); k += 1
    out.extend(fill[k:])
    return out

def v(a, n=1): return f"v{a}" if n == 1 else f"v[{a}:{a+n-1}]"
def s(a, n=1): return f"s{a}" if n == 1 else f"s[{a}:{a+n-1}]"
def ac(a, n=1): return f"a{a}" if n == 1 else f"a[{a}:{a+n-1}]"
```

```python
import sys, struct, math
from fw import *

WS_E = 0x0; WS_HELLO = 0x8000; WS_MOD = 0x2000; WS_DIAG = 0x10000
WS_G0 = 0x200000; WS_GS = 0x100000
G_KV = 0x0; G_O = 0x40000; G_Y = 0x60000; G_STAT = 0x7C000
G_FL = 0x7F800; G_FO = G_FL; G_FY = G_FL + 0x100; G_FH = G_FL + 0x200; G_FX = G_FL + 0x400
G_H = 0x80000; G_FKV = 0xF0000
WS_SIZE = WS_G0 + 16 * WS_GS
L_WK = 0; L_WV = 28672; L_WQ = 57344
L_WM = 114688
L_WO1 = 86016; L_WO2 = 0
L_W2S = 28672
L_W1 = 0; L_KV = 114688
L_TMP = 155648
L_SC = L_TMP; L_RED = L_TMP + 1024; L_RED2 = L_TMP + 1536; L_LG = L_TMP + 2048
L_UV = L_TMP; L_RS2 = L_TMP + 2048
L_MB = 160256
LDS_BYTES = 163840
S_W, S_R, S_J, S_TAG, S_SLOW = 3, 4, 5, 6, 7
SX, SWQ, SWO, SW1, SB1, SW2, SB2, SC_, SWM, SOUT, SWS, SH2, SH1 = 8, 12, 16, 20, 24, 28, 32, 36, 40, 44, 48, 52, 56
SCODE = SH2
S_GB = 60; T0, T1, T2, T3, T4 = 61, 62, 63, 64, 65
S_RH, S_CB, S_CNT, S_I = 66, 67, 68, 69
S_A, S_B, S_C, S_D, S_E, S_F = 70, 71, 72, 73, 74, 75
S_TAGF = 76; S_W2 = 77; S_M2, S_STEP, S_LC = 56, 57, 58
S_STAMP = 78; NSTAMP = 12
SPIN_MAX = 1 << 16
NEGBIG = 0xF149F2CA
MF = "v_mfma_f32_32x32x16_bf16"
WS = s(SWS, 4)

DEF = dict(nt=1, cpre=1, wmt=1, wqw=1, msleep=0, b0=4, b1=14, b2=14, b3=14, warm=1, n2c=0, kvf=6, look=6, hsc1=1, touch=1, htouch=1, out_sc1=0, wb=0,
           w2o=3, w2p3=3, w2y=3, uv1=12, uv2=8, e0=43, e1=10, c0=54, look5=12, w2end=54, w2gap=0, w2lag=7, c1=22, burst=2, pl=4, ntw=0, fl0=4, fl1=4, hth=0, p2x=3, wgp=15, xe=1, wmw=1)

def gen(diag=0, stamps=(), padat=None, padto=6000, **kw):
    P = dict(DEF); P.update(kw)
    a = Prog()
    NT = 'nt' if P['nt'] else ''; NTH = 'nt' if P['nt'] & 2 else ''; NTF = 'nt' if P['nt'] & 4 else ''
    stamps = list(stamps)
    NTW = lambda b: 'nt' if P['ntw'] & b else ''
    def stamp(name):
        if padat is not None:
            if name == "start": a(f"s_memrealtime {s(S_STAMP, 2)}")
            if name == padat:
                lab = a.newlab("L_pad"); a.label(lab)
                a(f"s_memrealtime s[80:81]\ns_waitcnt lgkmcnt(0)\ns_sub_u32 s80, s80, s{S_STAMP}\ns_cmp_lt_u32 s80, {padto}\ns_cbranch_scc1 {lab}")
            return
        if diag and name in stamps:
            a(f"{'s_memtime' if diag == 2 else 's_memrealtime'} {s(S_STAMP + 2 * stamps.index(name), 2)}")
    def tagcheck(checks, vt, stag=S_TAG):
        if len(checks) == 1: return [f"v_cmp_ne_u32 vcc, s{stag}, v{checks[0]}"]
        o = [f"v_xor_b32 v{vt}, s{stag}, v{checks[0]}"]
        for c in checks[1:]: o += [f"v_xor_b32 v{vt+1}, s{stag}, v{c}", f"v_or_b32 v{vt}, v{vt}, v{vt+1}"]
        return o + [f"v_cmp_ne_u32 vcc, 0, v{vt}"]
    def poll(loads, checks, vt):
        lab = a.newlab("L_poll")
        a(f"s_mov_b32 s{S_CNT}, 0")
        a.label(lab)
        for l in loads: a(l)
        a(f"s_add_u32 s{S_CNT}, s{S_CNT}, 1\ns_cmp_ge_u32 s{S_CNT}, {SPIN_MAX}\ns_cbranch_scc1 L_end\ns_waitcnt vmcnt(0)")
        a.add(tagcheck(checks, vt))
        a(f"s_cmp_lg_u64 vcc, 0\ns_cbranch_scc1 {lab}")
    def wgpoll(loads, checks, vt, local, pw=0):
        lab = a.newlab("L_wp")
        a(f"s_cmp_lg_u32 s{S_W}, {pw}\ns_cbranch_scc1 {lab}")
        poll(loads, checks, vt)
        if local: acquire()
        a.label(lab)
        a("s_waitcnt vmcnt(0)\ns_barrier")
    def check_ool(loads, checks, vt, local):
        lab = a.newlab("L_chk")
        o = tagcheck(checks, vt, S_TAGF if local else S_TAG) + ["s_cmp_lg_u64 vcc, 0", f"s_cbranch_scc1 {lab}", I(lab + "r:")]
        t = f"{lab}:\n  s_mov_b32 s{S_CNT}, 0\n{lab}l:\n" + "".join(f"  {l}\n" for l in loads)
        t += f"  s_add_u32 s{S_CNT}, s{S_CNT}, 1\n  s_cmp_ge_u32 s{S_CNT}, {SPIN_MAX}\n  s_cbranch_scc1 L_end\n  s_waitcnt vmcnt(0)\n"
        t += "".join(f"  {l}\n" for l in tagcheck(checks, vt)) + f"  s_nop 1\n  s_cmp_lg_u64 vcc, 0\n  s_cbranch_scc1 {lab}l\n"
        if local: t += f"  s_cmp_eq_u32 s{S_SLOW}, 0\n  s_cbranch_scc1 {lab}r\n  buffer_inv sc1\n  s_waitcnt vmcnt(0)\n"
        t += f"  s_branch {lab}r\n"
        a.ool.append(t)
        return o
    def acquire():
        lab = a.newlab("L_acq")
        a(f"s_cmp_lg_u32 s{S_SLOW}, 0\ns_cbranch_scc1 {lab}")
        a.label(lab + "r")
        a.ool.append(f"{lab}:\n  buffer_inv sc1\n  s_waitcnt vmcnt(0)\n  s_branch {lab}r\n")
    VL16, VTAG, VZ = 2, 3, 1
    def flag_local(soff, tok, imm=0):
        lab = a.newlab("L_rel")
        st = f"buffer_store_dword v{VTAG}, off, {WS}, s{soff} offset:{imm}"
        a.ool.append(f"{lab}:\n  buffer_wbl2 sc1\n  s_waitcnt vmcnt(0)\n  {st} sc1\n  s_branch {lab}r\n")
        return [f"s_cmp_lg_u32 s{S_SLOW}, 0", "s_mov_b64 exec, 1", Ctl("wait_tok", {tok}), f"s_cbranch_scc1 {lab}", st, I(lab + "r:"), "s_mov_b64 exec, -1"]
    def dma(vaddr, srd, sm0, m0imm, sbase, simm, tok, fl=""):
        return [I(f"s_add_u32 m0, s{sm0}, {m0imm}"), I(f"s_add_u32 s{T0}, s{sbase}, {simm}"),
                I(f"buffer_load_dwordx4 v{vaddr}, {s(srd,4)}, s{T0} offen {fl} lds", tok=tok)]
    def ldseq(dst, n, sbase, vaddr=VL16, tok=None, WS=WS):
        o = []
        for e in range(n):
            g = []
            if e and e % 4 == 0: g.append(f"s_add_u32 s{sbase}, s{sbase}, 4096")
            g.append(I(f"buffer_load_dwordx4 {v(dst+4*e,4)}, v{vaddr}, {WS}, s{sbase} offen offset:{1024*(e % 4)} sc1", tok=tok))
            o.append(g)
        return o

    stamp("start")
    a(f"""
    s_cmp_ge_u32 s2, 256
    s_cbranch_scc1 L_exit
    s_load_dwordx2 {s(SWS,2)}, s[0:1], 96
    s_load_dwordx2 {s(SC_,2)}, s[0:1], 64
    s_load_dwordx2 {s(SWM,2)}, s[0:1], 72
    s_load_dwordx2 {s(SX,2)}, s[0:1], 0
    s_load_dwordx2 {s(SWQ,2)}, s[0:1], 8
    s_load_dwordx2 {s(SOUT,2)}, s[0:1], 80
    s_getpc_b64 {s(SCODE,2)}
    """)
    a.label("L_codebase")
    if P["cpre"]:
        a(f"""
        s_mov_b32 s{SCODE+2}, L_codeend-L_codebase
        s_mov_b32 s{SCODE+3}, 0x20000
        v_lshlrev_b32 v1, 2, v0
        s_lshr_b32 s{T0}, s2, 3
        s_lshl_b32 s{T0}, s{T0}, 10
        s_mov_b32 exec_lo, 1
        s_mov_b32 exec_hi, 1
        buffer_load_dword v248, v1, {s(SCODE,4)}, s{T0} offen
        s_mov_b64 exec, -1
        """)
    a(f"v_lshrrev_b32 v1, 6, v0\nv_and_b32 v0, 63, v0\nv_readfirstlane_b32 s{S_W}, v1")
    for srd, n in ((SX, 1835008), (SWQ, 1204224), (SC_, 896), (SWM, 2408448), (SWS, WS_SIZE), (SOUT, 1835008)):
        a(f"s_mov_b32 s{srd+2}, {n}\ns_mov_b32 s{srd+3}, 0x20000")
    VW, VWR, VM, VT = 7, 8, 11, 240
    VD128, VHA = 1, 10
    S_U = S_W2
    S_IDX = S_TAGF
    a(f"""
    s_and_b32 s{T0}, s2, 7
    s_lshr_b32 s{S_I}, s2, 3
    s_and_b32 s{S_J}, s{S_I}, 15
    s_lshr_b32 s{T2}, s{S_I}, 4
    s_lshl1_add_u32 s{S_R}, s{T0}, s{T2}
    s_bitcmp1_b32 0x5ab, s{S_J}
    s_cselect_b32 s{S_F}, s{T0}, 7
    s_bfm_b32 s{T1}, s{S_J}, 0
    s_and_b32 s{T1}, s{T1}, 0x5ab
    s_bcnt1_i32_b32 s{T1}, s{T1}
    s_lshl1_add_u32 s{S_IDX}, s{S_J}, s{T2}
    s_mul_i32 s{T2}, s{T2}, 7
    s_add_u32 s{S_U}, s{T1}, s{T2}
    v_lshlrev_b32 v{VL16}, 4, v0
    s_lshl4_add_u32 s{T1}, s{S_R}, s{S_J}
    s_mul_i32 s{S_A}, s{T1}, {8*896}
    s_mul_i32 s{T1}, s{S_W}, 224
    s_add_u32 s{S_A}, s{S_A}, s{T1}
    v_and_b32 v{VT}, 7, v0
    v_lshrrev_b32 v{VT+1}, 3, v0
    v_mul_u32_u24 v{VT+2}, 896, v{VT}
    v_lshl_add_u32 v{VT+5}, v{VT+1}, 4, v{VT+2}
    v_lshlrev_b32 v{VT}, 4, v{VT}
    v_lshl_add_u32 v{VHA}, v{VT+1}, 9, v{VT}
    v_lshrrev_b32 v{VT}, 2, v0
    v_mul_u32_u24 v{VT}, 2688, v{VT}
    v_and_b32 v{VT+2}, 3, v0
    v_lshl_add_u32 v{VW}, v{VT+2}, 4, v{VT}
    v_add_u32 v{VM}, v{VW}, v{VT}
    v_lshlrev_b32 v{VT+3}, 2, v0
    s_lshl_b32 s{T4}, s{S_W}, 13
    s_add_u32 s{T4}, s{T4}, {L_WM}
    s_mul_i32 s{T1}, s{S_W}, {128*5376}
    s_mul_i32 s{T2}, s{S_F}, 896
    s_add_u32 s{T1}, s{T1}, s{T2}
    s_lshl_b32 s{T2}, s{S_U}, 6
    s_add_u32 s{T1}, s{T1}, s{T2}
    s_lshl_b32 s{T2}, s{S_W}, 8
    s_waitcnt lgkmcnt(0)
    """)
    stamp("karg")
    a(f"s_cmp_ge_u32 s{S_F}, 2\ns_cbranch_scc1 L_nomod1")
    a.cond_begin()
    a(f"buffer_load_dword v{VT+4}, v{VT+3}, {s(SC_,4)}, s{T2} offen", tok="c")
    for n in range(8): a.add(dma(VM, SWM, T4, n * 1024, T1, n * 16 * 5376, "wm", NT))
    a.cond_end()
    if P["wmt"]:
        a("s_branch L_nomod1b")
        a.label("L_nomod1")
        a(f"""
        s_and_b32 s{T0}, s2, 7
        s_sub_u32 s{T1}, s{S_I}, s{S_U}
        s_cmp_lt_u32 s{T1}, 16
        s_cselect_b32 s{T2}, s{T0}, 7
        s_cmp_ge_u32 s{T2}, 2
        s_cbranch_scc1 L_nomod1b
        """)
        a.cond_begin()
        a(f"""
        s_lshl2_add_u32 s{T1}, s{T1}, s{S_W}
        s_mul_i32 s{T1}, s{T1}, {4*5376}
        s_mul_i32 s{T0}, s{T0}, 896
        s_add_u32 s{T1}, s{T1}, s{T0}
        s_add_u32 s{T1}, s{T1}, {192*5376}
        v_mul_u32_u24 v{VT}, 5376, v{VT+1}
        v_and_b32 v{VT+2}, 7, v0
        v_lshl_add_u32 v{VT}, v{VT+2}, 7, v{VT}
        s_mov_b64 exec, 0x7f7f7f7f
        buffer_load_dword v{VT+8}, v{VT}, {s(SWM,4)}, s{T1} offen {NT}
        s_mov_b64 exec, -1
        """)
        a.cond_end()
        a.label("L_nomod1b")
    else: a.label("L_nomod1")
    stamp("wmiss")
    a(f"""
    s_load_dword s{S_TAG}, {s(SWS,2)}, {WS_E}
    s_load_dwordx2 {s(SWO,2)}, s[0:1], 16
    s_load_dwordx2 {s(SW1,2)}, s[0:1], 32
    s_load_dwordx2 {s(SB1,2)}, s[0:1], 40
    s_load_dwordx2 {s(SW2,2)}, s[0:1], 48
    s_load_dwordx2 {s(SB2,2)}, s[0:1], 56
    v_mov_b32 v20, 0
    v_mov_b32 v21, 0
    v_mov_b32 v22, 0
    v_mov_b32 v23, 0
    """)
    a(f"buffer_load_dwordx4 v[16:19], v{VT+5}, {s(SX,4)}, s{S_A} offen {NT}", tok="x")
    a("s_lshr_b64 exec, -1, 16")
    a(f"buffer_load_dwordx4 v[20:23], v{VT+5}, {s(SX,4)}, s{S_A} offen offset:128 {NT}", tok="x")
    a("s_mov_b64 exec, -1")
    def wave_only(w, items):
        lab = a.newlab("L_w")
        a(f"s_cmp_eq_u32 s{S_W}, {w}\ns_cbranch_scc0 {lab}")
        a.cond_begin(); a.add(items); a.cond_end()
        a.label(lab)
    def touch(srd, sidx, n):
        return [f"v_lshlrev_b32 v{VT+9}, 7, v0", f"s_mul_i32 s{T0}, s{sidx}, {n*128}", f"s_lshr_b64 exec, -1, {64-n}",
                f"buffer_load_dword v{VT+8}, v{VT+9}, {s(srd,4)}, s{T0} offen", "s_mov_b64 exec, -1"]
    a(f"""
    s_mul_i32 s{S_D}, s{S_W}, 43008
    s_mul_i32 s{T1}, s{S_J}, 56
    s_add_u32 s{S_D}, s{S_D}, s{T1}
    s_lshl_b32 s{S_E}, s{S_W}, 10
    s_lshl2_add_u32 s{S_CNT}, s2, s{S_W}
    s_lshl_b32 s{S_GB}, s{S_R}, 20
    s_add_u32 s{S_GB}, s{S_GB}, {WS_G0}
    s_lshr_b32 s{T1}, s{S_J}, 2
    s_lshl2_add_u32 s{S_B}, s{S_R}, s{T1}
    s_lshl2_add_u32 s{S_B}, s{S_B}, s{S_W}
    s_mul_i32 s{S_B}, s{S_B}, 7168
    s_and_b32 s{T2}, s{S_J}, 3
    s_lshl_b32 s{T3}, s{T2}, 7
    s_add_u32 s{S_B}, s{S_B}, s{T3}
    s_lshl2_add_u32 s{T2}, s{T2}, s{S_W}
    s_lshl4_add_u32 s{S_C}, s{T1}, s{T2}
    s_lshl2_add_u32 s{S_C}, s{S_C}, s{S_GB}
    s_add_u32 s{S_C}, s{S_C}, {G_FX}
    """)
    def wdma(n, ty): return dma(VW, SWQ, S_E, (L_WQ, L_WK, L_WV)[ty] + n * 4096, S_D, n * 4 * 43008 + ty * 896, "wq" if ty == 0 else "wkv", NTW(8))
    bulk = [wdma(n, ty) for n in range(7) for ty in (1, 2)] + [wdma(n, 0) for n in range(7)]
    b0, b1, b2, b3 = P["b0"], P["b1"], P["b2"], P["b3"]
    import copy
    htouch = [f"v_lshlrev_b32 v{VT+9}, 9, v0", "s_mov_b64 exec, 0x3fff", f"buffer_load_dword v{VT+8}, v{VT+9}, {s(SOUT,4)}, s{S_B} offen sc1 {NTH}",
              "s_mov_b64 exec, 1", f"buffer_load_dword v{VT+8}, off, {WS}, s{S_C} sc1", "s_mov_b64 exec, -1"]
    first = (touch(SWQ, S_CNT, 10) if P["wqw"] else []) + (htouch if not P["hth"] else []) + bulk[:b0]
    nfirst = b0 + P["wqw"] + (0 if P["hth"] else 2)
    a(f"s_cmp_lt_u32 s{S_F}, 2\ns_cbranch_scc1 L_nob0")
    a.cond_begin(); a.add(first); a.cond_end()
    a.label("L_nob0")
    for srd, n in ((SWO, 401408), (SW1, 1605632), (SB1, 3584), (SW2, 1605632), (SB2, 896)):
        a(f"s_mov_b32 s{srd+2}, {n}\ns_mov_b32 s{srd+3}, 0x20000")
    a(f"""
    s_cmp_ge_u32 s{S_J}, 7
    s_cselect_b32 s{S_RH}, 1, 0
    s_mul_i32 s{T1}, s{S_RH}, 7
    s_sub_u32 s{S_CB}, s{S_J}, s{T1}
    v_lshrrev_b32 v{VT+1}, 5, v0
    v_bfe_u32 v{VT}, v0, 2, 2
    v_lshl_add_u32 v{VT}, v{VT+1}, 3, v{VT}
    v_lshlrev_b32 v{VT}, 6, v{VT}
    v_and_b32 v{VT+2}, 3, v0
    v_lshl_add_u32 v{VT}, v{VT+2}, 3, v{VT}
    v_bfe_u32 v{VT+2}, v0, 4, 1
    v_lshl_add_u32 v{VWR}, v{VT+2}, 5, v{VT}
    v_add_u32 v{VWR+1}, {L_WQ}, v{VWR}
    v_lshrrev_b32 v{VT}, 3, v0
    v_mul_u32_u24 v{VT}, 896, v{VT}
    v_lshlrev_b32 v{VT+2}, 2, v{VT+2}
    v_and_b32 v{VT+1}, 7, v0
    v_xor_b32 v{VT+1}, v{VT+1}, v{VT+2}
    v_lshl_add_u32 v{VD128}, v{VT+1}, 4, v{VT}
    s_mul_i32 s{S_TAG}, s{S_TAG}, 0x9E3779B5
    s_add_u32 s{S_TAG}, s{S_TAG}, 0x7F4A7C15
    s_getreg_b32 s{S_SLOW}, hwreg(HW_REG_XCC_ID, 0, 4)
    v_mov_b32 v{VTAG}, s{S_TAG}
    """)
    stamp("issued")
    a(f"s_cmp_ge_u32 s{S_F}, 2\ns_cbranch_scc1 L_nomod2")
    a.cond_begin()
    c = VT + 4
    a(f"""
    s_lshl_b32 s{T0}, s{S_W}, 8
    s_add_u32 s{T0}, s{T0}, {L_SC}
    v_add_u32 v{VT+3}, s{T0}, v{VT+3}
    s_waitcnt vmcnt(10)
    """)
    a.L.append(Ctl("forget", {"c"}))
    stamp("cgot")
    a(f"""
    v_lshlrev_b32 v{c+1}, 16, v{c}
    v_and_b32 v{c+2}, 0xffff0000, v{c}
    v_mul_f32 v{c+3}, 0xbfb8aa3b, v{c+1}
    v_mul_f32 v{c}, 0xbfb8aa3b, v{c+2}
    v_exp_f32 v{c+3}, v{c+3}
    v_exp_f32 v{c}, v{c}
    v_lshrrev_b32 v{VT}, 4, v0
    v_add_f32 v{c+3}, 1.0, v{c+3}
    v_add_f32 v{c}, 1.0, v{c}
    v_rcp_f32 v{c+3}, v{c+3}
    v_rcp_f32 v{c}, v{c}
    v_lshl_add_u32 v{VT+1}, v{VT}, 4, s{T0}
    v_mul_f32 v{c+1}, v{c+1}, v{c+3}
    v_mul_f32 v{c+2}, v{c+2}, v{c}
    v_cvt_pk_bf16_f32 v{c}, v{c+1}, v{c+2}
    ds_write_b32 v{VT+3}, v{c}
    """)
    for n in range(4): a(f"ds_read_b128 v[{64+4*n}:{67+4*n}], v{VT+1} offset:{64*n}")
    a(f"""
    v_bfe_u32 v{VT+2}, v0, 2, 2
    v_lshl_add_u32 v{VT+2}, v{VT}, 3, v{VT+2}
    v_lshlrev_b32 v{VT+2}, 6, v{VT+2}
    v_and_b32 v{VT+9}, 3, v0
    v_lshl_add_u32 v{VT+2}, v{VT+9}, 3, v{VT+2}
    v_add_u32 v{VT+2}, s{T4}, v{VT+2}
    s_lshl_b32 s{T0}, s{S_W}, 7
    s_add_u32 s{T0}, s{T0}, {L_RED}
    v_lshl_add_u32 v{VT+11}, v{VT}, 4, s{T0}
    v_and_b32 v{VT+9}, 0x70, v{VL16}
    v_add_u32 v{VT+10}, {L_RED}, v{VT+9}
    """)
    stamp("silu")
    a.wait_tok("wm")
    stamp("wmgot")
    for n in range(4):
        for ct in range(2):
            for u in range(2): a(f"ds_read_b64_tr_b16 {v(96+8*n+4*ct+2*u,2)}, v{VT+2} offset:{n*2048 + u*256 + ct*32}")
    for n in range(4):
        for ct in range(2):
            a(f"v_mfma_f32_16x16x32_bf16 {v(80+4*ct,4)}, {v(96+8*n+4*ct,4)}, v[{64+4*n}:{67+4*n}], {'0' if n == 0 else v(80+4*ct,4)}")
    a(f"""
    s_cmp_eq_u32 s{S_F}, 1
    s_cselect_b32 s{T1}, 1.0, 0
    s_lshl4_add_u32 s{T2}, s{S_F}, s{S_U}
    s_lshl_b32 s{T2}, s{T2}, 7
    s_add_u32 s{T2}, s{T2}, {WS_MOD}
    ds_write_b128 v{VT+11}, v[80:83]
    ds_write_b128 v{VT+11}, v[84:87] offset:64
    """)
    a.wait_lds()
    stamp("mfma")
    a("s_barrier")
    stamp("mbar")
    a.wait_tok("x")
    stamp("xgot")
    a(f"s_cmp_lg_u32 s{S_W}, 0\ns_cbranch_scc1 L_nomod2")
    for n in range(4): a(f"ds_read_b128 v[{64+4*n}:{67+4*n}], v{VT+10} offset:{128*n}")
    a(f"""
    v_mov_b32 v82, s{S_TAG}
    v_mov_b32 v83, s{S_TAG}
    v_pk_add_f32 v[64:65], v[64:65], v[68:69]
    v_pk_add_f32 v[66:67], v[66:67], v[70:71]
    v_pk_add_f32 v[72:73], v[72:73], v[76:77]
    v_pk_add_f32 v[74:75], v[74:75], v[78:79]
    v_pk_add_f32 v[64:65], v[64:65], v[72:73]
    v_pk_add_f32 v[66:67], v[66:67], v[74:75]
    v_cvt_pk_bf16_f32 v80, v64, v65
    v_cvt_pk_bf16_f32 v81, v66, v67
    v_lshlrev_b32 v64, 16, v80
    v_and_b32 v65, 0xffff0000, v80
    v_lshlrev_b32 v66, 16, v81
    v_and_b32 v67, 0xffff0000, v81
    v_add_f32 v64, s{T1}, v64
    v_add_f32 v65, s{T1}, v65
    v_add_f32 v66, s{T1}, v66
    v_add_f32 v67, s{T1}, v67
    v_cvt_pk_bf16_f32 v80, v64, v65
    v_cvt_pk_bf16_f32 v81, v66, v67
    s_mov_b64 exec, 0xff
    buffer_store_dwordx4 v[80:83], v{VL16}, {WS}, s{T2} offen sc1
    s_mov_b64 exec, -1
    """)
    a.cond_end()
    a.label("L_nomod2")
    stamp("modpub")
    a(f"s_cmp_lt_u32 s{S_F}, 2\ns_cbranch_scc1 L_xok\ns_waitcnt vmcnt({nfirst})")
    a.label("L_xok")
    a.L.append(Ctl("forget", {"x"}))
    a("v_mov_b32 v12, 0\nv_mov_b32 v13, 0\nv_mov_b32 v56, 0x3f803f80")
    for d in range(8): a(f"v_dot2c_f32_bf16 v12, v{16+d}, v56\nv_dot2c_f32_bf16 v13, v{16+d}, v{16+d}")
    a(f"""
    v_and_b32 v{VT}, 7, v0
    v_lshlrev_b32 v{VT}, 4, v{VT}
    v_lshrrev_b32 v{VT+1}, 5, v0
    v_permlane32_swap_b32 v12, v13
    v_add_f32 v12, v12, v13
    v_mov_b32 v13, v12
    v_add_u32 v{VT}, {L_RED2}, v{VT}
    v_lshl_add_u32 v{VT+2}, v{VT+1}, 7, v{VT}
    v_permlane16_swap_b32 v12, v13
    v_add_f32 v12, v12, v13
    s_lshl_b32 s{T0}, s{S_W}, 2
    v_add_u32 v{VT+2}, s{T0}, v{VT+2}
    v_add_f32_dpp v12, v12, v12 row_ror:8 row_mask:0xf bank_mask:0xf
    ds_write_b32 v{VT+2}, v12
    """)
    for d in range(8): a(f"v_lshlrev_b32 v{24+2*d}, 16, v{16+d}\nv_and_b32 v{25+2*d}, 0xffff0000, v{16+d}")
    a.wait_lds()
    a("s_barrier")
    a(f"""
    ds_read_b128 v[40:43], v{VT}
    ds_read_b128 v[44:47], v{VT} offset:128
    v_and_b32 v{VT+2}, 31, v0
    v_min_u32 v{VT+2}, 27, v{VT+2}
    v_lshlrev_b32 v{VT+3}, 4, v{VT+2}
    v_lshl_add_u32 v{VT+3}, v{VT+1}, 11, v{VT+3}
    s_lshl_b32 s{T0}, s{S_W}, 9
    s_add_u32 s{T0}, s{T0}, {L_LG}
    v_lshl_add_u32 v{VT+2}, v{VT+2}, 3, s{T0}
    v_lshl_add_u32 v{VT+2}, v{VT+1}, 8, v{VT+2}
    v_lshrrev_b32 v{VT+4}, 3, v0
    v_lshl_add_u32 v{VT+4}, v{VT+4}, 4, s{T0}
    v_lshrrev_b32 v{VT}, 2, v0
    v_lshlrev_b32 v{VT+1}, 7, v{VT}
    v_lshlrev_b32 v{VT}, 2, v{VT}
    v_pk_add_f32 v[40:41], v[40:41], v[42:43]
    v_pk_add_f32 v[44:45], v[44:45], v[46:47]
    v_add_f32 v12, v40, v41
    v_add_f32 v13, v44, v45
    v_mul_f32 v12, 0x3b124925, v12
    v_mul_f32 v13, 0x3b124925, v13
    v_fma_f32 v13, -v12, v12, v13
    v_max_f32 v13, 0, v13
    v_add_f32 v13, 0x3727c5ac, v13
    v_rsq_f32 v14, v13
    s_mul_i32 s{S_A}, s{S_W}, 448
    s_add_u32 s{S_A}, s{S_A}, {WS_MOD}
    v_mul_f32_e64 v12, -v12, v14
    """)
    wave_only(3, f"""
    s_lshl4_add_u32 s{T1}, s{S_R}, s{S_J}
    s_lshl_b32 s{T1}, s{T1}, 7
    s_add_u32 s{T1}, s{T1}, {WS_HELLO}
    v_mov_b32 v{VT+6}, s{S_SLOW}
    v_mov_b32 v{VT+7}, s{S_TAG}
    s_mov_b64 exec, 1
    buffer_store_dwordx2 v[{VT+6}:{VT+7}], off, {WS}, s{T1} sc1
    s_mov_b64 exec, -1
    """.strip().split("\n"))
    a(f"s_cmp_ge_u32 s{S_F}, 2\ns_cbranch_scc1 L_xp")
    a.cond_begin(); a.add(copy.deepcopy(first)); a.cond_end()
    a.label("L_xp")
    def warm_all(w2=True):
        a(f"v_lshlrev_b32 v{VT+9}, 7, v0\ns_lshl2_add_u32 s{T0}, s2, s{S_W}\ns_mul_i32 s{T0}, s{T0}, 392\ns_mov_b64 exec, 0xf")
        a(f"buffer_load_dword v{VT+8}, v{VT+9}, {s(SWO,4)}, s{T0} offen\ns_lshl_b32 s{T0}, s{T0}, 2\ns_mov_b64 exec, 0x1fff")
        a(f"buffer_load_dword v{VT+8}, v{VT+9}, {s(SW1,4)}, s{T0} offen")
        if w2: a(f"buffer_load_dword v{VT+8}, v{VT+9}, {s(SW2,4)}, s{T0} offen")
        if P["wmw"]:
            a(f"s_lshl2_add_u32 s{T0}, s2, s{S_W}\ns_lshr_b32 s{S_LC}, s{T0}, 1\ns_mul_i32 s{S_LC}, s{S_LC}, 5376\ns_and_b32 s{T0}, s{T0}, 1\ns_mul_i32 s{T0}, s{T0}, 1792")
            a(f"s_add_u32 s{T0}, s{T0}, s{S_LC}\ns_mov_b64 exec, 0x3fff\nbuffer_load_dword v{VT+8}, v{VT+9}, {s(SWM,4)}, s{T0} offen offset:1792")
        a("s_mov_b64 exec, -1")
    if P["hth"]: a.add(htouch)
    if P["warm"] == 1: warm_all()
    bm = min(b1, b0 + 2)
    a.add(bulk[b0:bm])
    for d in range(8): a(f"v_pk_fma_f32 v[{24+2*d}:{25+2*d}], v[{24+2*d}:{25+2*d}], v[14:15], v[12:13] op_sel_hi:[1,0,0]")
    stamp("ln1")
    a.add(bulk[bm:b1])
    if P['warm'] == 4: warm_all()
    a(f"""
    s_lshl_b32 s{T3}, s{S_CB}, 7
    s_mul_i32 s{S_W2}, s{S_W}, {16*896}
    s_add_u32 s{S_W2}, s{S_W2}, s{T3}
    s_mul_i32 s{S_F}, s{S_W}, {7*8*896}
    s_add_u32 s{S_F}, s{S_F}, s{T3}
    s_mov_b32 s{S_STEP}, {8*896}
    s_mul_i32 s{T4}, s{S_W}, {7*1024}
    s_lshl_b32 s{T3}, s{S_R}, 11
    s_add_u32 s{T3}, s{T3}, {WS_HELLO}
    s_add_u32 s{T2}, s{S_B}, 4096
    """)
    stamp("modpoll")
    poll(([f"s_sleep {P['msleep']}"] if P["msleep"] else []) + [f"buffer_load_dwordx4 v[40:43], v{VT+3}, {WS}, s{S_A} offen sc1"], [42], 58)
    stamp("modgot")
    hl = [f"buffer_load_dwordx2 v[56:57], v{VT+1}, {WS}, s{T3} offen sc1"]
    a.add(hl)
    a(f"ds_write_b64 v{VT+2}, v[40:41]")
    for ch in range(2):
        a(f"ds_read_b128 {v(40+8*ch,4)}, v{VT+4} offset:{128*ch}\nds_read_b128 {v(44+8*ch,4)}, v{VT+4} offset:{256+128*ch}")
    a(f"""
    s_lshl_b32 s{S_A}, s{S_W}, 6
    s_add_u32 s{S_A}, s{S_A}, s{S_GB}
    s_add_u32 s{S_A}, s{S_A}, {G_FX}
    """)
    for ch in range(2):
        for d in range(8): a(f"v_lshlrev_b32 v{64+2*d}, 16, v{40+8*ch+d}\nv_and_b32 v{65+2*d}, 0xffff0000, v{40+8*ch+d}")
        for d in range(4):
            x = 24 + 8 * ch + 2 * d
            a(f"v_pk_fma_f32 v[{x}:{x+1}], v[{x}:{x+1}], v[{72+2*d}:{73+2*d}], v[{64+2*d}:{65+2*d}]")
        for d in range(4): a(f"v_cvt_pk_bf16_f32 v{16+4*ch+d}, v{24+8*ch+2*d}, v{25+8*ch+2*d}")
        if ch: a("s_lshr_b64 exec, -1, 16")
        a(f"buffer_store_dwordx4 v[{16+4*ch}:{19+4*ch}], v{VHA}, {s(SOUT,4)}, s{T2 if ch else S_B} offen", tok="h")
    a(f"s_mov_b64 exec, -1\ns_lshl2_add_u32 s{S_B}, s{S_R}, s{S_W}\ns_mul_i32 s{S_B}, s{S_B}, 28672")
    a.add(bulk[b1:b2])
    a.add(check_ool(hl, [57], 58, False))
    a(f"v_cmp_ne_u32 vcc, s{S_SLOW}, v56\ns_cmp_lg_u64 vcc, 0\ns_cselect_b32 s{S_SLOW}, -1, 0\ns_xor_b32 s{S_TAGF}, s{S_TAG}, s{S_SLOW}")
    a.add(flag_local(S_C, "h"))
    stamp("hflag")
    if P["xe"]:
        a(f"""
        s_lshl1_add_u32 s{T1}, s{S_R}, s{S_RH}
        s_and_b32 s{T2}, s{S_W}, 1
        s_lshl1_add_u32 s{T1}, s{T1}, s{T2}
        s_mul_i32 s{T1}, s{T1}, {32*896}
        s_lshr_b32 s{T2}, s{S_W}, 1
        s_lshl1_add_u32 s{T2}, s{S_CB}, s{T2}
        s_lshl_b32 s{T2}, s{T2}, 6
        s_add_u32 s{T1}, s{T1}, s{T2}
        v_and_b32 v{VT+2}, 31, v0
        v_mul_u32_u24 v{VT+2}, 896, v{VT+2}
        v_lshrrev_b32 v{VT+3}, 5, v0
        v_lshl_add_u32 v{VT+2}, v{VT+3}, 4, v{VT+2}
        buffer_load_dwordx4 v[16:19], v{VT+2}, {s(SX,4)}, s{T1} offen
        buffer_load_dwordx4 v[20:23], v{VT+2}, {s(SX,4)}, s{T1} offen offset:32
        """)
    a.add(bulk[b2:b3])
    assert b3 >= 14
    early_bar = b1 >= 14
    if early_bar: a("s_barrier")
    VH = 96; VAK, VAV, VAQ = 208, 224, 64
    def ring1(ks): return 208 + 8 * (ks % 6)
    def rd_kv(ks):
        return [f"ds_read_b64_tr_b16 {ac(ring1(ks)+4*ty+2*u,2)}, v{VWR} offset:{(L_WK, L_WV)[ty] + ks*1024 + u*256}" for ty in range(2) for u in range(2)]
    def rd_q(ks):
        return [f"ds_read_b64_tr_b16 {ac(ring1(ks+4)+2*u,2)}, v{VWR+1} offset:{ks*1024 + u*256}" for u in range(2)]
    if early_bar:
        for ks in range(3): a.add(rd_kv(ks))
    if P["wgp"] & 1:
        a(f"v_lshlrev_b32 v{VT}, 2, v0\ns_add_u32 s{S_A}, s{S_GB}, {G_FX}")
        wgpoll([f"buffer_load_dword v{VT+1}, v{VT}, {WS}, s{S_A} offen sc1"], [VT + 1], VT + 2, True)
    else:
        poll([f"buffer_load_dword v{VT+1}, v{VT}, {WS}, s{S_A} offen sc1"], [VT + 1], VT + 2)
        acquire()
    stamp("hgot")
    D = P["look"]
    loads = ldseq(VH, 28, S_B, WS=s(SOUT, 4))
    if early_bar: a.add(loads[:D])
    else:
        a.add(loads[:2])
        if not P["wgp"] & 1: a("s_barrier")
        for ks in range(3): a.add(rd_kv(ks))
        a.add(loads[2:D])
    VKVB = 6
    VR128, VR128P = 4, 12
    VDWO = VT + 15
    pre = f"""
    v_cmp_lt_u32 s[{T1}:{T2}], 31, v0
    v_and_b32 v{VT}, 31, v0
    v_cmp_eq_u32 vcc, 28, v{VT}
    v_mov_b32 v{VT+1}, 0x3f803f80
    v_mov_b32 v{VT+2}, 0x3f800000
    s_lshl2_add_u32 s{T3}, s{S_J}, s{S_W}
    s_lshl_b32 s{S_A}, s{T3}, 12
    s_add_u32 s{S_A}, s{S_A}, s{S_GB}
    s_lshl_b32 s{S_C}, s{T3}, 7
    s_add_u32 s{S_C}, s{S_C}, s{S_GB}
    s_add_u32 s{S_C}, s{S_C}, {G_FKV}
    s_lshl_b32 s{T3}, s{S_W}, 12
    s_add_u32 s{T3}, s{T3}, {L_KV}
    v_add_u32 v{VKVB}, s{T3}, v{VL16}
    v_mov_b32 v{VDWO}, v{VD128}
    s_add_u32 s{S_I}, s{T4}, {L_W2S}
    v_lshrrev_b32 v{VT+5}, 5, v0
    v_lshlrev_b32 v{VT+5}, 2, v{VT+5}
    v_sub_u32 v{VT+4}, v{VT}, v{VT+5}
    v_mov_b32 v{VT+5}, {NEGBIG:#x}
    v_mov_b32 v{VT+6}, 0
    """.strip().split("\n")
    for ks in range(28):
        h = v(VH + 4 * ks, 4); rg = ring1(ks)
        rd = rd_kv(ks + 3) if ks + 3 < 28 else []
        a.add([Ctl("wait_regs", regs_of(ac(rg, 8))),
               f"{MF} {v(VAK,16)}, {ac(rg,4)}, {h}, {v(VAK,16) if ks else '0'}", loads[ks + D] if ks + D < len(loads) else [], rd[:2],
               f"{MF} {v(VAV,16)}, {h}, {ac(rg+4,4)}, {v(VAV,16) if ks else '0'}", rd[2:], pre[ks:ks + 1]])
        if ks == 28 - D and P["warm"] in (5, 6): warm_all(P["warm"] == 5)
    stamp("kvdone")
    VXRES, VB2 = 16, 24
    VQ, VKO, VVO, VM2, VKM = 32, 40, 48, 56, 64
    VS, VP, VO, VC1, VC2, VVS = 128, 160, 176, 192, 208, 224
    A_WO, A_W2A, A_W2B = 0, 128, 0
    def w2reg(late, jj): return (A_W2B if late else A_W2A) + jj * 8
    def w2dma(late, jj, sm0, ldsoff, tok):
        return [dma(VD128, SW2, sm0, ldsoff + g * 1024, S_W2, ((8 * jj + 4 * late) * 16 + 8 * g) * 896, tok, NTW(4)) for g in range(2)]
    n2a = P["n2c"]; assert n2a <= 3
    for d in range(4): a(f"v_cvt_pk_bf16_f32 v{VKO+d}, v{VAK+2*d}, v{VAK+2*d+1}")
    a(f"buffer_store_dwordx4 {v(VKO,4)}, v{VL16}, {WS}, s{S_A} offen sc1", tok="kv")
    for d in range(4, 8): a(f"v_cvt_pk_bf16_f32 v{VKO+d}, v{VAK+2*d}, v{VAK+2*d+1}")
    a(f"v_cndmask_b32 v{VKO+6}, v{VKO+6}, v{VT+2}, s[{T1}:{T2}]\nv_cndmask_b32 v{VKO+7}, v{VKO+7}, v{VT+1}, s[{T1}:{T2}]")
    a(f"buffer_store_dwordx4 {v(VKO+4,4)}, v{VL16}, {WS}, s{S_A} offen offset:1024 sc1", tok="kv")
    for f in range(2):
        for d in range(4 * f, 4 * f + 4):
            a(f"v_cvt_pk_bf16_f32 v{VVO+d}, v{VAV+2*d}, v{VAV+2*d+1}\nv_cndmask_b32 v{VVO+d}, v{VVO+d}, v{VT+1}, vcc")
        a(f"buffer_store_dwordx4 {v(VVO+4*f,4)}, v{VL16}, {WS}, s{S_A} offen offset:{2048+1024*f} sc1", tok="kv")
    stamp("kvst")
    a("s_barrier")
    if P["warm"] == 3: warm_all()
    a(f"s_cmp_lt_u32 s{S_J}, 14\ns_cbranch_scc1 L_nohs")
    a.cond_begin()
    a(f"""
    s_lshl1_add_u32 s{S_LC}, s{S_R}, s{S_J}
    s_mov_b32 s{SWO}, s{SWM}
    s_mov_b32 s{SWO+1}, s{SWM+1}
    s_cmp_lt_u32 s{S_LC}, 42
    s_cselect_b32 s{SWO+2}, 2408448, 0
    s_mov_b32 s{SW1+2}, 0
    s_mov_b32 s{SW2+2}, 0
    s_mov_b32 s{S_STEP}, {8*5376}
    s_mul_i32 s{S_F}, s{S_W}, {56*5376}
    s_lshl_b32 s{T3}, s{S_LC}, 7
    s_add_u32 s{S_F}, s{S_F}, s{T3}
    v_lshrrev_b32 v{VT+7}, 3, v0
    v_mul_u32_u24 v{VT+7}, {5376-896}, v{VT+7}
    v_add_u32 v{VDWO}, v{VD128}, v{VT+7}
    v_lshlrev_b32 v{VT+7}, 2, v0
    s_lshl_b32 s{T3}, s{S_W}, 8
    buffer_load_dword v{VM2}, v{VT+7}, {s(SC_,4)}, s{T3} offen
    """)
    a.cond_end()
    a.label("L_nohs")
    def wodma(e):
        o = [I(f"s_add_u32 m0, s{T4}, {(L_WO1 if e < 7 else L_WO2) + (e % 7) * 1024}")]
        if e == 7: o += [I(f"s_mul_i32 s{T0}, s{S_STEP}, 22"), I(f"s_add_u32 s{S_F}, s{S_F}, s{T0}")]
        elif e: o += [I(f"s_add_u32 s{S_F}, s{S_F}, s{S_STEP}")]
        return o + [I(f"buffer_load_dwordx4 v{VDWO}, {s(SWO,4)}, s{S_F} offen {NTW(1)} lds", tok="wo")]
    memq = bulk[b3:] + [wodma(e) for e in range(14)] + [g for jj in range(n2a) for g in w2dma(0, jj, S_I, jj * 2048, "w2a")]
    kvflag = ["s_mov_b64 exec, 1", Ctl("wait_tok", {"kv"}), f"buffer_store_dword v{VTAG}, off, {WS}, s{S_C} sc1", "s_mov_b64 exec, -1"]
    own = [f"s_cmp_eq_u32 s{S_W}, 3", "s_cbranch_scc1 L_noown", Ctl("cond_begin")] + \
          [f"ds_write_b128 v{VKVB}, {v(VKO+4*f,4)} offset:{8*4096+1024*f}" for f in range(4)] + [Ctl("cond_end"), I("L_noown:")]
    kvf = min(P["kvf"], len(memq))
    a.add(memq[:kvf])
    a.add(own)
    fl2 = f"""
    v_bfe_u32 v{VT+7}, v0, 2, 2
    v_lshlrev_b32 v{VT+7}, 7, v{VT+7}
    v_and_b32 v{VT+10}, 3, v0
    v_lshl_add_u32 v{VT+7}, v{VT+10}, 3, v{VT+7}
    v_bfe_u32 v{VT+10}, v0, 4, 1
    v_lshl_add_u32 v{VT+7}, v{VT+10}, 5, v{VT+7}
    v_bfe_u32 v{VT+10}, v0, 3, 1
    s_lshr_b32 s{T3}, s{S_W}, 1
    v_xor_b32 v{VT+10}, s{T3}, v{VT+10}
    v_lshl_add_u32 v{VR128P}, v{VT+10}, 6, v{VT+7}
    v_lshrrev_b32 v{VT+10}, 5, v0
    v_lshl_add_u32 v{VR128}, v{VT+10}, 9, v{VR128P}
    v_xor_b32 v{VR128+1}, 64, v{VR128}
    s_xor_b32 s{T3}, s{T3}, 1
    s_mul_i32 s{T3}, s{T3}, {L_WO1}
    v_add_u32 v{VR128P}, s{T3}, v{VR128P}
    v_xor_b32 v{VR128P+1}, 64, v{VR128P}
    v_add_u32 v14, s{T3}, v{VR128}
    v_add_u32 v15, s{T3}, v{VR128+1}
    v_add_u32 v10, s{S_I}, v{VR128}
    v_add_u32 v11, s{S_I}, v{VR128+1}
    v_min_u32 v{VT+13}, {55*16}, v{VL16}
    v_lshrrev_b32 v{VT+14}, 6, v{VT+13}
    v_lshlrev_b32 v{VT+14}, 5, v{VT+14}
    v_bfe_u32 v{VT+10}, v{VT+13}, 5, 1
    v_lshl_add_u32 v{VT+14}, v{VT+10}, 3, v{VT+14}
    v_and_or_b32 v{VT+14}, v{VT+13}, 16, v{VT+14}
    s_mul_i32 s{T3}, s{S_W}, 896
    s_add_u32 s{T3}, s{T3}, {L_MB}
    v_add_u32 v{VT+14}, s{T3}, v{VT+14}
    s_lshl_b32 s{S_M2}, s{S_W}, 11
    s_add_u32 s{S_M2}, s{S_M2}, {WS_MOD + 4096}
    """.strip().split("\n")
    for r_ in range(16):
        a.add([f"v_cmp_gt_i32 vcc, {(r_ & 3) + 8 * (r_ >> 2)}, v{VT+4}", fl2[2 * r_:2 * r_ + 2], f"v_cndmask_b32 v{VC2+r_}, v{VT+6}, v{VT+5}, vcc"])
    a.add(kvflag); stamp("kvflag")
    a.add(memq[kvf:])
    S_LW = S_E
    a(f"""
    s_lshr_b32 s{T3}, s{S_W}, 1
    s_sub_u32 s{T4}, 2, s{T3}
    s_mov_b32 s{SH2}, s{SWS}
    s_mov_b32 s{SH2+1}, s{SWS+1}
    s_mov_b32 s{SH2+3}, 0x20000
    s_cmp_ge_u32 s{S_R}, s{T4}
    s_cselect_b32 s{SH2+2}, {WS_SIZE}, 0
    s_cselect_b32 s{T4}, s{T4}, 0
    s_lshl_b32 s{T4}, s{T4}, 20
    s_sub_u32 s{T4}, s{S_GB}, s{T4}
    s_lshl_b32 s{S_B}, s{S_J}, 9
    s_add_u32 s{S_B}, s{S_B}, s{T4}
    s_add_u32 s{S_B}, s{S_B}, {G_FKV}
    v_lshrrev_b32 v{VT}, 4, v0
    v_lshlrev_b32 v{VT}, 7, v{VT}
    s_and_b32 s{S_A}, s{S_W}, 1
    s_lshl_b32 s{S_A}, s{S_A}, 10
    s_lshl_b32 s{S_D}, s{S_J}, 14
    s_add_u32 s{S_D}, s{S_D}, s{T4}
    s_add_u32 s{S_D}, s{S_D}, s{S_A}
    s_lshl_b32 s{T3}, s{T3}, 14
    s_add_u32 s{S_A}, s{S_A}, s{T3}
    s_add_u32 s{S_A}, s{S_A}, {L_KV}
    """)
    def silu(c, vaddr):
        return f"""
        v_lshlrev_b32 v{c+1}, 16, v{c}
        v_and_b32 v{c+2}, 0xffff0000, v{c}
        v_mul_f32 v{c+3}, 0xbfb8aa3b, v{c+1}
        v_mul_f32 v{c}, 0xbfb8aa3b, v{c+2}
        v_exp_f32 v{c+3}, v{c+3}
        v_exp_f32 v{c}, v{c}
        v_add_f32 v{c+3}, 1.0, v{c+3}
        v_add_f32 v{c}, 1.0, v{c}
        v_rcp_f32 v{c+3}, v{c+3}
        v_rcp_f32 v{c}, v{c}
        v_mul_f32 v{c+1}, v{c+1}, v{c+3}
        v_mul_f32 v{c+2}, v{c+2}, v{c}
        v_cvt_pk_bf16_f32 v{c}, v{c+1}, v{c+2}
        ds_write_b32 v{vaddr}, v{c}
        """
    a(f"s_cmp_lt_u32 s{S_J}, 14\ns_cbranch_scc1 L_nohs2")
    a.cond_begin()
    a(f"s_lshl_b32 s{T3}, s{S_W}, 8\ns_add_u32 s{T3}, s{T3}, {L_MB}\nv_lshl_add_u32 v{VT+7}, v0, 2, s{T3}")
    a(silu(VM2, VT + 7))
    a.cond_end()
    a.label("L_nohs2")
    a("s_waitcnt lgkmcnt(0)")
    stamp("kvpoll")
    if P["wgp"] & 2:
        a(f"""
        s_cmp_eq_u32 s{S_R}, 1
        s_cselect_b32 s{T3}, {WS_GS}, 0
        s_sub_u32 s{S_B}, s{S_B}, s{T3}
        s_cmp_eq_u32 s{S_R}, 0
        s_cselect_b32 s{T3}, 0, {WS_GS >> 5}
        v_and_b32 v{VT}, 32, v0
        v_mul_u32_u24 v{VT}, s{T3}, v{VT}
        v_bfe_u32 v{VT+3}, v0, 3, 2
        v_lshl_add_u32 v{VT}, v{VT+3}, 7, v{VT}
        """)
        wgpoll([f"buffer_load_dword v{VT+3}, v{VT}, {WS}, s{S_B} offen sc1"], [VT + 3], VT + 6, False)
    else: poll([f"buffer_load_dword v{VT+3}, v{VT}, {WS}, s{S_B} offen sc1"], [VT + 3], VT + 6)
    stamp("kvgot")
    halo = [dma(VL16, SH2, S_A, tile * 4096 + kv_ * 2048, S_D, tile * 4096 + kv_ * 2048, ("halok", "halov")[kv_], "sc1") for kv_ in range(2) for tile in range(4)]
    a.add(halo[:4])
    if not P["wgp"] & 2: a("s_barrier")
    for ks in range(3): a.add(rd_q(ks))
    a.add(halo[4:])
    order = [8, 7, 6, 5, 4, 3, 2, 1, 0]
    def kreg(n): return VKO if n == 8 else VKM + 8 * n
    def cin(n): return v(VC2, 16) if n == 8 else v(VC1, 16) if n == 0 else "0"
    def qk(n, sb): return [f"{MF} {v(sb,16)}, {v(kreg(n),4)}, {v(VQ,4)}, {cin(n)}",
                           f"{MF} {v(sb,16)}, {v(kreg(n)+4,4)}, {v(VQ+4,4)}, {v(sb,16)}"]
    rdw = []
    for hh in range(8):
        for m in range(2):
            for sl in range(2):
                for u in range(2):
                    ad = (VR128P + sl) if (m == 1 and u == 1) else (14 + sl)
                    rdw.append(f"ds_read_b64_tr_b16 {ac(A_WO+((hh*2+m)*2+sl)*4+2*u,2)}, v{ad} offset:{(28*hh+16*m+8*u)*128}")
    for jj in range(n2a):
        for sl in range(2):
            for u in range(2):
                rdw.append(f"ds_read_b64_tr_b16 {ac(w2reg(0,jj)+4*sl+2*u,2)}, v{10+sl} offset:{jj*2048 + u*1024}")
    VD256, VOUT, VB1 = 7, 8, 9
    adr = f"""
    v_add_u32 v{VT+11}, s{S_A}, v{VL16}
    v_lshrrev_b32 v{VT+2}, 4, v0
    v_mul_u32_u24 v{VT+3}, 3584, v{VT+2}
    v_lshlrev_b32 v{VT+2}, 2, v{VT+2}
    v_and_b32 v{VT+8}, 15, v0
    v_xor_b32 v{VT+2}, v{VT+2}, v{VT+8}
    v_lshl_add_u32 v{VD256}, v{VT+2}, 4, v{VT+3}
    s_lshl_b32 s{S_C}, s{S_W}, 10
    s_mul_i32 s{S_A}, s{S_W}, {4*3584}
    s_min_u32 s{T3}, s{S_J}, 13
    s_lshl_b32 s{T3}, s{T3}, 8
    s_add_u32 s{S_A}, s{S_A}, s{T3}
    s_lshl_b32 s{T4}, s{S_W}, 6
    s_add_u32 s{S_F}, s{T3}, s{T4}
    s_lshl1_add_u32 s{T3}, s{S_R}, s{S_RH}
    s_and_b32 s{T4}, s{S_W}, 1
    s_lshl1_add_u32 s{T3}, s{T3}, s{T4}
    s_mul_i32 s{T3}, s{T3}, {32*896}
    s_lshr_b32 s{T4}, s{S_W}, 1
    s_lshl1_add_u32 s{S_B}, s{S_CB}, s{T4}
    s_lshl_b32 s{S_STEP}, s{S_B}, 11
    s_add_u32 s{S_STEP}, s{S_STEP}, s{T3}
    s_lshl_b32 s{S_B}, s{S_B}, 6
    s_add_u32 s{T3}, s{T3}, s{S_B}
    v_and_b32 v{VT+4}, 31, v0
    v_mul_u32_u24 v{VT+3}, 896, v{VT+4}
    v_lshrrev_b32 v{VT+1}, 5, v0
    v_lshlrev_b32 v{VT+7}, 4, v{VT+1}
    v_add3_u32 v{VOUT}, v{VT+3}, v{VT+7}, s{T3}
    v_mul_u32_u24 v{VT+12}, 0xF149, v{VT+1}
    v_lshlrev_b32 v{VT+4}, 1, v{VT+4}
    v_lshlrev_b32 v{VT+1}, 3, v{VT+1}
    s_lshl4_add_u32 s{T3}, s{S_W}, s{S_J}
    s_lshl_b32 s{S_D}, s{T3}, 11
    s_add_u32 s{S_D}, s{S_D}, s{S_GB}
    s_add_u32 s{S_D}, s{S_D}, {G_O}
    s_lshl2_add_u32 s{S_LW}, s{T3}, s{S_GB}
    s_add_u32 s{S_LW}, s{S_LW}, {G_FO}
    v_lshrrev_b32 v{VT+8}, 2, v0
    v_lshlrev_b32 v{VT+8}, 7, v{VT+8}
    v_lshlrev_b32 v{VT+9}, 4, v{VT+1}
    s_lshl_b32 s{T4}, s{T3}, 8
    s_add_u32 s{T4}, s{T4}, s{S_GB}
    s_add_u32 s{T4}, s{T4}, {G_STAT}
    s_and_b32 s{S_CNT}, s{S_W}, 1
    s_cmp_eq_u32 s{SH2+2}, 0
    s_cselect_b32 s{S_CNT}, s{S_CNT}, 0
    """.strip().split("\n")
    def mq(ks): return f"{MF} {v(VAQ,16)}, {ac(ring1(ks+4),4)}, {v(VH+4*ks,4)}, {v(VAQ,16) if ks else '0'}"
    na = len(adr) - 12
    for ks in range(28):
        a(mq(ks))
        if ks + 3 < 28: a.add(rd_q(ks + 3))
        a.add(rdw[len(rdw) * ks // 28:len(rdw) * (ks + 1) // 28])
        a.add(adr[na * ks // 28:na * (ks + 1) // 28])
    a.add(adr[na:])
    QS = struct.unpack("<I", struct.pack("<f", math.log2(math.e) / math.sqrt(28.0)))[0]
    a(f"v_mov_b32 v{VT+2}, {QS:#x}\nv_mov_b32 v{VT+10}, 0x3f80")
    for i in range(8): a(f"v_pk_mul_f32 v[{VAQ+2*i}:{VAQ+2*i+1}], v[{VAQ+2*i}:{VAQ+2*i+1}], v[{VT+2}:{VT+3}] op_sel_hi:[1,0]")
    for d in range(8): a(f"v_cvt_pk_bf16_f32 v{VQ+d}, v{VAQ+2*d}, v{VAQ+2*d+1}")
    a(f"v_cndmask_b32 v{VQ+6}, v{VQ+6}, v{VT+10}, s[{T1}:{T2}]\nv_cndmask_b32 v{VQ+7}, v{VQ+7}, v{VT+6}, s[{T1}:{T2}]")
    a(f"v_mov_b32 v{VT+6}, v{VT+1}\ns_mov_b32 s{T1}, s{S_STEP}\ns_mov_b32 s{T2}, s{S_CNT}")
    a.add(qk(8, VS))
    for r_ in range(16): a(f"v_sub_f32 v{VC1+r_}, v{VT+5}, v{VC2+r_}")
    stamp("qdone")
    a(f"s_cmp_lt_u32 s{S_J}, 14\ns_cbranch_scc1 L_nohs3\ns_cmp_ge_u32 s{S_LC}, 42\ns_cbranch_scc1 L_nohs3")
    a.cond_begin()
    a(f"""
    v_lshrrev_b32 v{VM2}, 4, v0
    v_bfe_u32 v{VM2+1}, v0, 2, 2
    v_lshl_add_u32 v{VM2+1}, v{VM2}, 3, v{VM2+1}
    v_lshlrev_b32 v{VM2+1}, 7, v{VM2+1}
    v_and_b32 v{VM2+2}, 3, v0
    v_lshl_add_u32 v{VM2+1}, v{VM2+2}, 3, v{VM2+1}
    v_bfe_u32 v{VM2+2}, v0, 3, 1
    v_lshl_add_u32 v{VM2+1}, v{VM2+2}, 6, v{VM2+1}
    s_lshl_b32 s{T0}, s{S_W}, 5
    v_xor_b32 v{VM2+1}, s{T0}, v{VM2+1}
    v_add_u32 v{VM2+2}, {L_WO1}, v{VM2+1}
    v_lshlrev_b32 v{VM2}, 4, v{VM2}
    v_add_u32 v{VM2+3}, {L_MB}, v{VM2}
    """)
    for hf_ in range(2):
        for n in range(7):
            a(f"ds_read_b128 {v(64+8*n,4)}, v{VM2+3} offset:{64*(7*hf_+n)}")
            for u in range(2): a(f"ds_read_b64_tr_b16 {v(68+8*n+2*u,2)}, v{VM2+2-hf_} offset:{n*4096 + u*512}")
        for n in range(7): a(f"v_mfma_f32_16x16x32_bf16 v[120:123], {v(68+8*n,4)}, {v(64+8*n,4)}, {'0' if n + hf_ == 0 else 'v[120:123]'}")
    a(f"""
    s_mul_i32 s{T0}, s{S_LC}, 37
    s_lshr_b32 s{T0}, s{T0}, 8
    s_cmp_eq_u32 s{T0}, 4
    s_cselect_b32 s{T3}, 1.0, 0
    s_add_u32 s{T0}, s{T0}, s{S_LC}
    s_lshl2_add_u32 s{T0}, s{T0}, s{S_W}
    s_lshl_b32 s{T0}, s{T0}, 6
    s_add_u32 s{T0}, s{T0}, {WS_MOD}
    v_mov_b32 v126, s{S_TAG}
    v_mov_b32 v127, s{S_TAG}
    v_cvt_pk_bf16_f32 v124, v120, v121
    v_cvt_pk_bf16_f32 v125, v122, v123
    v_lshlrev_b32 v120, 16, v124
    v_and_b32 v121, 0xffff0000, v124
    v_lshlrev_b32 v122, 16, v125
    v_and_b32 v123, 0xffff0000, v125
    v_add_f32 v120, s{T3}, v120
    v_add_f32 v121, s{T3}, v121
    v_add_f32 v122, s{T3}, v122
    v_add_f32 v123, s{T3}, v123
    v_cvt_pk_bf16_f32 v124, v120, v121
    v_cvt_pk_bf16_f32 v125, v122, v123
    s_mov_b32 exec_lo, 0x00010001
    s_mov_b32 exec_hi, 0x00010001
    buffer_store_dwordx4 v[124:127], v{VM2}, {WS}, s{T0} offen sc1
    s_mov_b64 exec, -1
    """)
    a.cond_end()
    a.label("L_nohs3")
    MX = VT
    SB3 = [VS, VS + 16, VO]
    def mx(p, sb):
        o = []
        for i in range(8):
            d = MX + (i & 1)
            o.append(f"v_max_f32 v{d}, v{sb+2*i}, v{sb+2*i+1}" if p == 0 and i < 2 else f"v_max3_f32 v{d}, v{sb+2*i}, v{sb+2*i+1}, v{d}")
        return o
    a.add(mx(0, VS))
    a.wait_tok("halok")
    a(f"s_cmp_eq_u32 s{T2}, 0\ns_cbranch_scc1 L_nofix")
    a.cond_begin()
    for m in range(4): a(f"ds_write_b32 v{VT+11}, v{VT+12} offset:{m*4096+8}")
    a.cond_end()
    a.label("L_nofix")
    a("s_waitcnt lgkmcnt(0)")
    a("s_barrier")
    stamp("p2")
    kr = [f"ds_read_b128 {v(VKM+8*n+4*f,4)}, v{VKVB} offset:{n*4096+f*1024}" for n in order[1:] for f in range(2)]
    mem2 = []
    if P["touch"]: mem2.append([f"buffer_load_dword v{VT+10}, v{VT+8}, {WS}, s{S_D} offen sc1 {NTF}"])
    mem2 += [dma(VD256, SW1, S_C, L_W1 + n * 4096, S_A, n * 16 * 3584, "w1", NTW(2)) for n in range(28)]
    xl = [[f"buffer_load_dwordx4 {v(VXRES+4*pr,4)}, v{VOUT}, {s(SX,4)}, 0 offen offset:{32*pr} {NT}"] for pr in range(2)]
    bl = [[f"buffer_load_dwordx2 {v(VB2+2*jj,2)}, v{VT+6}, {s(SB2,4)}, s{S_B} offen offset:{16*jj}" for jj in range(4)] +
          [f"buffer_load_ushort v{VB1}, v{VT+4}, {s(SB1,4)}, s{S_F} offen"]]
    yt = [[f"buffer_load_dword v{VT+10}, v{VT+8}, {s(SOUT,4)}, s{T1} offen sc1 {NTF}", f"buffer_load_dword v{VT+10}, v{VT+9}, {WS}, s{T4} offen sc1 {NTF}"]]
    m2l = [f"buffer_load_dwordx4 {v(VM2+4*q,4)}, v{VT+13}, {WS}, s{S_M2} offen offset:{896*q} sc1" for q in range(2)]
    mem2 = mem2[:1] + (yt if P["p2x"] & 2 else []) + ([] if P["xe"] else xl) + bl + mem2[1:20] + (yt if P["p2x"] & 1 else []) + mem2[20:] + [m2l]
    mi = 0
    a.add(kr[:6]); a.add(mem2[:2]); mi = 2
    for p in range(1, 11):
        mm = qk(order[p], SB3[p % 3]) if p < 9 else [[], []]
        f = mx(p - 2, SB3[(p - 2) % 3]) if p >= 3 else (kr[6:11] if p == 1 else kr[11:16])
        h_ = 4 if p >= 3 else 3
        a.add([mm[0]] + f[:h_] + [mm[1]] + f[h_:])
        if 3 <= p < 10: a.add(mem2[mi]); mi += 1
        if p == 9: a.wait_tok("halov"); a("s_barrier")
    a(f"""
    v_max_f32 v{MX}, v{MX}, v{MX+1}
    v_mov_b32 v{MX+1}, v{MX}
    v_cmp_lt_u32 vcc, 31, v0
    {qk(order[0], VS)[0]}
    v_permlane32_swap_b32 v{MX}, v{MX+1}
    v_max_f32 v{MX}, v{MX}, v{MX+1}
    v_xor_b32 v{MX}, 0x80000000, v{MX}
    v_and_b32 v{MX+1}, 0xffff0000, v{MX}
    v_sub_f32 v{MX}, v{MX}, v{MX+1}
    v_and_b32 v{MX+2}, 0xffff0000, v{MX}
    v_sub_f32 v{MX}, v{MX}, v{MX+2}
    v_or_b32 v{MX+1}, 0x3f80, v{MX+1}
    v_cvt_pk_bf16_f32 v{MX}, v{MX+2}, v{MX}
    v_cndmask_b32 v{VQ+6}, v{VQ+6}, v{MX+1}, vcc
    v_cndmask_b32 v{VQ+7}, v{VQ+7}, v{MX}, vcc
    """)
    def vreg(p):
        n = order[p]
        return VVO if n == 8 else VVS + 8 * (p & 1)
    def rdv(p):
        n = order[p]
        return [f"ds_read_b128 {v(vreg(p)+4*f,4)}, v{VKVB} offset:{n*4096+2048+f*1024}" for f in range(2)]
    def pv(p):
        pb = VP + 8 * (p & 1)
        return [f"{MF} {v(VO,16)}, {v(vreg(p),4)}, {v(pb,4)}, {'0' if p == 0 else v(VO,16)}",
                f"{MF} {v(VO,16)}, {v(vreg(p)+4,4)}, {v(pb+4,4)}, {v(VO,16)}"]
    def ex(p):
        sb = VS + 16 * (p & 1); pb = VP + 8 * (p & 1); o = []
        for g in range(4):
            grp = [f"v_exp_f32 v{sb+4*g+i}, v{sb+4*g+i}" for i in range(4)]
            if g: grp += [f"v_cvt_pk_bf16_f32 v{pb+2*(g-1)+i}, v{sb+4*(g-1)+2*i}, v{sb+4*(g-1)+2*i+1}" for i in range(2)]
            if g == 3: grp += [f"v_cvt_pk_bf16_f32 v{pb+6+i}, v{sb+12+2*i}, v{sb+12+2*i+1}" for i in range(2)]
            o.append(grp)
        return o
    a.add(mem2[mi]); mi += 1
    a(qk(order[0], VS)[1])
    a.add(mem2[mi:mi + 3]); mi += 3
    rest = len(mem2) - mi
    for p in range(9):
        q = qk(order[p + 1], VS + 16 * ((p + 1) & 1)) if p < 8 else [[], []]
        pp = pv(p - 1) if p >= 1 else [[], []]
        e = ex(p)
        n_ = min(3, len(mem2) - mi); mm_ = mem2[mi:mi + n_] + [[]] * (3 - n_); mi += n_
        if p < 8: a.add([q[0], e[0], mm_[0], q[1], e[1], mm_[1], pp[0], e[2], mm_[2], pp[1], rdv(p + 1), e[3]])
        else:
            last = pv(8)
            a.add([pp[0], e[0], pp[1], e[1], e[2], last[0], e[3], last[1]])
    assert mi == len(mem2)
    VR1, VR1H = 10, 88
    a(f"""
    v_bfe_u32 v{VT+4}, v0, 2, 2
    v_lshrrev_b32 v{VT+5}, 5, v0
    v_lshl_add_u32 v{VT+5}, v{VT+5}, 2, v{VT+4}
    v_lshlrev_b32 v{VT+5}, 8, v{VT+5}
    v_lshl_add_u32 v{VT+5}, v{VT+4}, 6, v{VT+5}
    v_and_b32 v{VT+4}, 3, v0
    v_lshl_add_u32 v{VT+5}, v{VT+4}, 3, v{VT+5}
    v_bfe_u32 v{VT+4}, v0, 4, 1
    v_lshl_add_u32 v{VR1}, v{VT+4}, 5, v{VT+5}
    v_mov_b32 v{VT+2}, 0
    v_mov_b32 v{VT}, v{VO+12}
    v_mov_b32 v{VT+1}, v{VO+12}
    v_xor_b32 v{VR1+1}, 64, v{VR1}
    v_xor_b32 v{VR1+2}, 128, v{VR1}
    v_permlane32_swap_b32 v{VT}, v{VT+1}
    v_rcp_f32 v{VT}, v{VT+1}
    v_xor_b32 v{VR1+3}, 192, v{VR1}
    """)
    for f in range(2):
        for i in range(4 * f, 4 * f + 4): a(f"v_pk_mul_f32 v[{VO+2*i}:{VO+2*i+1}], v[{VO+2*i}:{VO+2*i+1}], v[{VT}:{VT+1}] op_sel_hi:[1,0]")
        for d in range(4 * f, 4 * f + 4): a(f"v_cvt_pk_bf16_f32 v{VP+d}, v{VO+2*d}, v{VO+2*d+1}")
        if f: a(f"v_cndmask_b32 v{VP+6}, v{VP+6}, v{VT+2}, vcc\nv_cndmask_b32 v{VP+7}, v{VP+7}, v{VT+2}, vcc")
        a(f"buffer_store_dwordx4 {v(VP+4*f,4)}, v{VL16}, {WS}, s{S_D} offen offset:{1024*f}", tok="o")
    stamp("ost")
    a(f"s_cmp_ge_u32 s{S_J}, 14\ns_cbranch_scc1 L_helper")
    VGA, VG2, VX1_, VGB = 32, 48, 64, 80
    UACC, UB = 192, 208
    VUW, VUG, VD128B = VT + 12, VT + 14, VT + 15
    a.add(check_ool(m2l, [VM2 + 2, VM2 + 6], 64, False))
    a(f"ds_write_b64 v{VT+14}, {v(VM2,2)}\nds_write_b64 v{VT+14}, {v(VM2+4,2)} offset:448")
    for i in range(4): a(f"v_add_u32 v{VR1H+i}, 57344, v{VR1+i}")
    a(f"""
    s_lshl_b32 s{T3}, s{S_W}, 6
    v_xor_b32 v{VUW}, s{T3}, v{VR1}
    v_xor_b32 v{VUW+1}, s{T3}, v{VR1H}
    v_bfe_u32 v{VUG}, v0, 2, 1
    v_mul_u32_u24 v{VUG}, 896, v{VUG}
    v_sub_u32 v{VUG}, v{VT+7}, v{VUG}
    v_add_u32 v{VUG}, {L_MB+1792}, v{VUG}
    v_add_u32 v{VT+3}, s{S_B}, v{VT+7}
    v_add_u32 v{VT+3}, {L_MB}, v{VT+3}
    v_add_u32 v{VD128B}, {7168-1024}, v{VD128}
    s_and_b32 s{T3}, s{S_W}, 1
    s_lshl1_add_u32 s{T3}, s{S_RH}, s{T3}
    s_lshr_b32 s{T4}, s{S_W}, 1
    s_lshl1_add_u32 s{S_A}, s{T3}, s{T4}
    s_lshl_b32 s{S_D}, s{S_A}, 14
    s_lshl_b32 s{S_A}, s{S_A}, 5
    s_add_u32 s{S_A}, s{S_A}, s{S_GB}
    s_add_u32 s{S_A}, s{S_A}, {G_FO}
    s_add_u32 s{S_D}, s{S_D}, s{S_GB}
    s_add_u32 s{S_D}, s{S_D}, {G_O}
    v_and_b32 v{VT}, 7, v0
    v_lshlrev_b32 v{VT}, 2, v{VT}
    """)
    unp = []
    for src, dst in ((96, VGA), (104, VG2), (VXRES, VX1_)):
        for d in range(8): unp += [f"v_lshlrev_b32 v{dst+2*d}, 16, v{src+d}", f"v_and_b32 v{dst+2*d+1}, 0xffff0000, v{src+d}"]
    a.add(flag_local(S_LW, "o"))
    stamp("oflag")
    a(f"""
    s_mul_i32 s{S_LW}, s{S_W}, 10240
    s_add_u32 s{S_LW}, s{S_LW}, {L_KV}
    v_add_u32 v14, s{S_LW}, v{VR128}
    v_add_u32 v15, s{S_LW}, v{VR128+1}
    """)
    a.wait_lds()
    a("s_barrier")
    for m in range(2):
        a(f"ds_read_b128 {v(96+4*m,4)}, v{VT+3} offset:{32*m}")
        a(f"ds_read_b128 {v(104+4*m,4)}, v{VT+3} offset:{1792+32*m}")
        a(f"ds_read_b128 {v(VGB+4*m,4)}, v{VT+3} offset:{2688+32*m}")
    todo = [(0, jj) for jj in range(n2a, 14)] + [(1, jj) for jj in range(14)]
    def w2_dma(k, slot):
        lt, jj = todo[k]
        return [[Ctl("wait_tok", {f"slot{slot}"}), f"s_add_u32 m0, s{S_LW}, {slot*2048}", f"s_add_u32 s{T0}, s{S_W2}, {(8*jj+4*lt)*16*896}",
                 I(f"buffer_load_dwordx4 v{VD128}, {s(SW2,4)}, s{T0} offen {NTW(4)} lds", tok=f"w2_{k}")],
                I(f"buffer_load_dwordx4 v{VD128B}, {s(SW2,4)}, s{T0} offen offset:1024 {NTW(4)} lds", tok=f"w2_{k}")]
    def w2_rd(k, slot):
        lt, jj = todo[k]
        o = [I(f"ds_read_b64_tr_b16 {ac(w2reg(lt,jj)+4*sl+2*u,2)}, v{14+sl} offset:{slot*2048 + u*1024}", tok=f"slot{slot}") for sl in range(2) for u in range(2)]
        o[0] = [Ctl("wait_tok", {f"w2_{k}"}), o[0]]
        return o
    def rd_uv(ks):
        b = UB + 8 * (ks % 4)
        return [f"ds_read_b128 {v(b,4)}, v{VUG} offset:{32*ks}"] + \
               [f"ds_read_b64_tr_b16 {v(b+4+2*u,2)}, v{VUW + (ks >= 14)} offset:{((ks % 14)*16+8*u)*256}" for u in range(2)]
    def uv_steps(k0, k1, fill):
        for ks in range(k0, k1):
            b = UB + 8 * (ks % 4)
            a(f"{MF} {v(UACC,16)}, {v(b,4)}, {v(b+4,4)}, {'0' if ks == 0 else v(UACC,16)}")
            if ks + 3 < 28: a.add(rd_uv(ks + 3))
            n = k1 - k0; i = ks - k0
            a.add(fill[len(fill) * i // n:len(fill) * (i + 1) // n])
    nA, nB, nC = P["w2o"], P["w2p3"], P["w2y"]
    assert nA + nB <= 14 - n2a + 0 or True
    kA = list(range(nA)); kB = list(range(nA, nA + nB)); kC = list(range(nA + nB, nA + nB + nC))
    assert all(todo[k][0] == 0 for k in kA)
    for ks in range(3): a.add(rd_uv(ks))
    swp = [f"v_permlane32_swap_b32 v{VXRES+q}, v{VXRES+q+2}" for q in (0, 1, 4, 5)]
    u1 = P["uv1"]
    uv_steps(0, u1, [x for q, k in enumerate(kA) for x in w2_dma(k, 2 + q)] + swp + unp[:32])
    if P["wgp"] & 4:
        a(f"v_and_b32 v{VT}, 31, v0\nv_lshlrev_b32 v{VT}, 2, v{VT}")
        wgpoll([f"buffer_load_dword v{VT+1}, v{VT}, {WS}, s{S_A} offen sc1"], [VT + 1], VT + 2, True)
    else:
        poll([f"buffer_load_dword v{VT+1}, v{VT}, {WS}, s{S_A} offen sc1"], [VT + 1], VT + 2)
        acquire()
    stamp("ogot")
    VOF, VA3 = 96, 160
    loads = ldseq(VOF, 16, S_D)
    a.add(loads[:D])
    f3 = [x for q, k in enumerate(kA) for x in w2_rd(k, 2 + q)] + unp[32:] + f"""
    v_add_u32 v{VT}, s{S_LW}, v{VL16}
    s_xor_b32 s{T2}, s{S_W}, 2
    s_mul_i32 s{T2}, s{T2}, 10240
    s_add_u32 s{T2}, s{T2}, {L_KV}
    v_add_u32 v{VT+1}, s{T2}, v{VL16}
    s_lshl1_add_u32 s{T2}, s{S_CB}, s{T4}
    s_mul_i32 s{S_B}, s{T3}, 14
    s_add_u32 s{S_B}, s{S_B}, s{T2}
    s_lshl4_add_u32 s{S_C}, s{T3}, s{T2}
    s_lshl2_add_u32 s{S_C}, s{S_C}, s{S_GB}
    s_add_u32 s{S_C}, s{S_C}, {G_FY}
    s_lshl_b32 s{S_B}, s{S_B}, 8
    s_add_u32 s{S_B}, s{S_B}, s{S_GB}
    s_add_u32 s{S_B}, s{S_B}, {G_STAT}
    v_lshlrev_b32 v{VT+2}, 2, v0
    """.strip().split("\n")
    loads += [x for q, k in enumerate(kB) for x in w2_dma(k, 2 + q)]
    def m3(e, sl):
        acc = v(VA3 + 16 * sl, 16)
        return f"{MF} {acc}, {ac(A_WO+(e*2+sl)*4,4)}, {v(VOF+4*e,4)}, {'0' if e == 0 else acc}"
    seq3 = []
    for e in range(16):
        seq3.append((e, 1))
        if e < 12: seq3.append((e, 0))
    seq3 += [(12, 0), (13, 0), (14, 0), (15, 0)]
    k = 0
    xw = [f"ds_write_b128 v{VT+1}, {v(VA3+16+4*f,4)} offset:{1024*f}" for f in range(4)]
    for i, (e, sl) in enumerate(seq3):
        a(m3(e, sl))
        if sl == 1:
            if e + D < len(loads): a.add(loads[e + D])
        elif i < 28:
            a.add(f3[k:k + 3]); k += 3
        elif i == 28: a.add(f3[k:])
        elif i == 30: a.add(xw)
    a.wait_lds()
    a("s_barrier")
    for f in range(4): a(f"ds_read_b128 {v(VA3+16+4*f,4)}, v{VT} offset:{1024*f}", tok="slot0")
    for i in range(8): a(f"v_pk_fma_f32 {v(VX1_+2*i,2)}, {v(VA3+2*i,2)}, {v(VGA+2*i,2)}, {v(VX1_+2*i,2)}")
    for hf_ in range(2):
        R_ = range(4 * hf_, 4 * hf_ + 4)
        for i in R_: a(f"v_pk_fma_f32 {v(VX1_+2*i,2)}, {v(VA3+16+2*i,2)}, {v(VGA+2*i,2)}, {v(VX1_+2*i,2)}")
        for i in R_: a(f"v_pk_mul_f32 {v(VA3+2*i,2)}, {v(VX1_+2*i,2)}, {v(VG2+2*i,2)}")
        for i in R_: a(f"v_cvt_pk_bf16_f32 v{VOF+i}, v{VA3+2*i}, v{VA3+2*i+1}")
        a(f"buffer_store_dwordx4 {v(VOF+4*hf_,4)}, v{VL16}, {s(SOUT,4)}, s{T1} offen offset:{1024*hf_}", tok="y")
    a(f"v_pk_add_f32 {v(VT+4,2)}, {v(VX1_,2)}, {v(VX1_+2,2)}\nv_pk_mul_f32 {v(VT+6,2)}, {v(VX1_,2)}, {v(VX1_,2)}")
    a(f"v_pk_fma_f32 {v(VT+6,2)}, {v(VX1_+2,2)}, {v(VX1_+2,2)}, {v(VT+6,2)}")
    for i in range(2, 8):
        a(f"v_pk_add_f32 {v(VT+4,2)}, {v(VT+4,2)}, {v(VX1_+2*i,2)}\nv_pk_fma_f32 {v(VT+6,2)}, {v(VX1_+2*i,2)}, {v(VX1_+2*i,2)}, {v(VT+6,2)}")
    a(f"v_add_f32 v{VT+4}, v{VT+4}, v{VT+5}\nv_add_f32 v{VT+5}, v{VT+6}, v{VT+7}")
    a(f"v_permlane32_swap_b32 v{VT+4}, v{VT+5}\nv_add_f32 v{VT+4}, v{VT+4}, v{VT+5}")
    a(f"buffer_store_dword v{VT+4}, v{VT+2}, {WS}, s{S_B} offen", tok="y")
    stamp("yst")
    VY = 96
    VA4 = [208, 224, 32, 48]
    S_HB = S_F
    f4 = f"""
    s_lshl_b32 s{S_A}, s{S_W}, 6
    s_add_u32 s{S_A}, s{S_A}, s{S_GB}
    s_add_u32 s{S_A}, s{S_A}, {G_FY}
    v_min_u32 v{VT}, 13, v0
    v_lshlrev_b32 v{VT}, 2, v{VT}
    s_lshl2_add_u32 s{S_D}, s{S_R}, s{S_W}
    s_mul_i32 s{S_D}, s{S_D}, 28672
    s_mul_i32 s{S_B}, s{S_W}, 3584
    s_add_u32 s{S_B}, s{S_B}, s{S_GB}
    s_add_u32 s{S_B}, s{S_B}, {G_STAT}
    v_lshlrev_b32 v{VB1}, 16, v{VB1}
    v_cmp_lt_u32 vcc, 31, v0
    v_lshlrev_b32 v{VT+3}, 3, v0
    v_add_u32 v{VT+3}, {L_UV}, v{VT+3}
    v_cndmask_b32 v{VB1}, 0, v{VB1}, vcc
    s_lshl_b32 s{T2}, s{S_W}, 9
    v_add_u32 v{VT+5}, s{T2}, v{VT+3}
    v_add_u32 v{VT+2}, s{S_LW}, v{VT+2}
    """.strip().split("\n")
    u2 = min(28, u1 + P["uv2"])
    uv_steps(u1, u2, [x for q, k in enumerate(kB) for x in w2_rd(k, 2 + q)] + f4[:5])
    a.add(flag_local(S_C, "y"))
    stamp("yflag")
    uv_steps(u2, 28, [x for q, k in enumerate(kC) for x in w2_dma(k, 2 + q)] + f4[5:])
    ring = [112, 120, 240, 248]
    seq = [(0, ks) for ks in range(29)] + [(1, ks) for ks in range(29)]
    def rd_seq(i):
        half, ks = seq[i]; b = ring[i % 4]
        if ks == 28: return [f"ds_read_b64 {ac(b+4*t_,2)}, v{VT+3} offset:{(2*half+t_)*512}" for t_ in range(2)]
        return [f"ds_read_b64_tr_b16 {ac(b+4*t_+2*u,2)}, v{(VR1H if ks >= 14 else VR1)+2*half+t_} offset:{((ks % 14)*16+8*u)*256}" for t_ in range(2) for u in range(2)]
    for i in range(3): a.add(rd_seq(i))
    if P["wgp"] & 8:
        a(f"v_and_b32 v{VT}, 15, v0\nv_min_u32 v{VT}, 13, v{VT}\nv_and_b32 v{VT+1}, 48, v0\nv_add_lshl_u32 v{VT}, v{VT}, v{VT+1}, 2")
        wgpoll([f"buffer_load_dword v{VT+1}, v{VT}, {WS}, s{S_A} offen sc1"], [VT + 1], VT + 6, True)
    else:
        poll([f"buffer_load_dword v{VT+1}, v{VT}, {WS}, s{S_A} offen sc1"], [VT + 1], VT + 6)
        acquire()
    stamp("ygot")
    loads = ldseq(VY, 28, S_D, WS=s(SOUT, 4))
    a.add(loads[:D])
    uvf = f"""
    v_add_f32 v{UACC}, v{UACC}, v{VB1}
    v_cvt_pk_bf16_f32 v{UACC+1}, v{UACC}, v{UACC}
    v_and_b32 v{UACC+1}, 0xffff0000, v{UACC+1}
    v_sub_f32 v{UACC+2}, v{UACC}, v{UACC+1}
    v_cvt_pk_bf16_f32 v{VT+8}, v{UACC+1}, v{UACC+2}
    v_mov_b32 v{VT+9}, v{VT+8}
    """.strip().split("\n") + [I(f"ds_write_b64 v{VT+5}, v[{VT+8}:{VT+9}]", tok="uv")]
    stl = [I(f"buffer_load_dwordx4 v{VL16}, {WS}, s{S_B} offen offset:{1024*e} sc1 lds", tok="stat") for e in range(4)]
    stl[0] = [f"s_mov_b32 m0, s{S_LW}", stl[0]]
    str_ = [I(f"ds_read2st64_b32 v[{32+2*e}:{33+2*e}], v{VT+2} offset0:{2*e} offset1:{2*e+1}", tok="slot0" if e < 6 else "slot1") for e in range(7)]
    str_[0] = [Ctl("wait_tok", {"stat"}), str_[0]]
    VXE = 92
    st = [f"v_add_f32 v{32+i}, v{32+i}, v{39+i}" for i in range(7)]
    st += ["v_add_f32 v32, v32, v33", "v_add_f32 v34, v34, v35", "v_add_f32 v36, v36, v37", "v_add_f32 v32, v32, v34", "v_add_f32 v36, v36, v38",
           "v_add_f32 v32, v32, v36", "v_mul_f32 v32, 0x3b124925, v32", "v_mov_b32 v33, v32", f"s_lshl_b32 s{T2}, s{S_W}, 7", f"s_add_u32 s{T2}, s{T2}, {L_RS2}",
           "v_permlane32_swap_b32 v32, v33",
           "v_fma_f32 v33, -v32, v32, v33", "v_max_f32 v33, 0, v33", "v_add_f32 v33, 0x3727c5ac, v33",
           "v_rcp_f32 v34, v33", "v_sqrt_f32 v33, v33", "v_xor_b32 v32, 0x80000000, v32", "v_cmp_lt_u32 vcc, 31, v0",
           f"v_and_b32 v35, 31, v0", f"v_lshl_add_u32 v35, v35, 2, s{T2}", "v_cndmask_b32 v32, v32, v33, vcc", "ds_write_b32 v35, v34",
           f"v_cvt_pk_bf16_f32 v{VXE}, v32, v32", f"v_and_b32 v33, 0xffff0000, v{VXE}", "v_sub_f32 v33, v32, v33",
           f"v_cvt_pk_bf16_f32 v{VXE+1}, v33, v33", f"v_mov_b32 v{VXE+2}, 0", f"v_mov_b32 v{VXE+3}, 0"]
    def epi4(half):
        o = []
        for t_ in range(2):
            b = VA4[2 * half + t_]
            for m in range(2):
                for i in range(8): o.append(f"v_max_f32 v{b+8*m+i}, 0, v{b+8*m+i}")
                for i in range(8): o.append(f"v_mul_f32 v{b+8*m+i}, v{b+8*m+i}, v{b+8*m+i}")
                for d in range(4): o.append(f"v_cvt_pk_bf16_f32 v{b+8*m+d}, v{b+8*m+2*d}, v{b+8*m+2*d+1}")
                o.append(I(f"buffer_store_dwordx4 {v(b+8*m,4)}, v{VL16}, {WS}, s{S_HB} offen offset:{(2*t_+m)*1024} {'sc1' if P['hsc1'] else ''}", tok=f"h{half}"))
        return o
    def mf_seq(i):
        half, ks = seq[i]; b = ring[i % 4]; x = v(VY + 4 * ks, 4) if ks < 28 else v(VXE, 4); o = []
        for t_ in range(2):
            acc = v(VA4[2 * half + t_], 16)
            o.append(f"{MF} {acc}, {ac(b+4*t_,4)}, {x}, {'0' if ks == 0 else acc}")
        return o
    VA5 = [v(208, 16), v(224, 16), ac(112, 16), ac(240, 16)]
    VHX = VT + 10
    S_H5 = S_I
    steps = [(0, jj, sl) for jj in range(14) for sl in range(2)] + [(1, jj, 1) for jj in range(14)] + [(1, jj, 0) for jj in range(14)]
    def ld5(i):
        late, jj, sl = steps[i]
        o = []
        if late or sl == 0: o.append(f"s_add_u32 s{T1}, s{S_H5}, {(8*jj+4*late)*1024}")
        o.append(f"buffer_load_dwordx4 {v(VY+4*(i % 28),4)}, v{VHX+sl}, {WS}, s{T1} offen sc1")
        return o
    p5a = f"""
    s_mul_i32 s{S_HB}, s{S_W}, 114688
    s_lshl_b32 s{T2}, s{S_J}, 13
    s_add_u32 s{S_HB}, s{S_HB}, s{T2}
    s_add_u32 s{S_HB}, s{S_HB}, s{S_GB}
    s_add_u32 s{S_HB}, s{S_HB}, {G_H}
    s_lshl4_add_u32 s{S_C}, s{S_W}, s{S_J}
    s_lshl2_add_u32 s{S_C}, s{S_C}, s{S_GB}
    s_add_u32 s{S_C}, s{S_C}, {G_FH}
    s_lshl_b32 s{S_A}, s{S_RH}, 7
    s_add_u32 s{S_A}, s{S_A}, s{S_GB}
    s_add_u32 s{S_A}, s{S_A}, {G_FH}
    v_and_b32 v{VT}, 15, v0
    v_min_u32 v{VT}, 13, v{VT}
    v_and_b32 v{VT+1}, 16, v0
    v_add_lshl_u32 v{VT}, v{VT}, v{VT+1}, 2
    s_mul_i32 s{T2}, s{T3}, 114688
    v_add_u32 v{VHX}, s{T2}, v{VL16}
    s_xor_b32 s{T2}, s{T3}, 1
    s_mul_i32 s{T2}, s{T2}, 114688
    v_add_u32 v{VHX+1}, s{T2}, v{VL16}
    s_lshl_b32 s{S_H5}, s{S_W}, 10
    s_add_u32 s{S_H5}, s{S_H5}, s{S_GB}
    s_add_u32 s{S_H5}, s{S_H5}, {G_H}
    s_lshl_b32 s{T2}, s{T3}, 7
    s_add_u32 s{T2}, s{T2}, {L_RS2}
    v_and_b32 v{VB1}, 31, v0
    v_lshl_add_u32 v{VB1}, v{VB1}, 2, s{T2}
    """.strip().split("\n")
    hp = [f"buffer_load_dword v{VT+1}, v{VT}, {WS}, s{S_A} offen offset:{256*lt} sc1" for lt in range(2)]
    extra = {i: [] for i in range(114)}
    def spread(lst, i0, i1):
        n = i1 - i0
        for k, x in enumerate(lst): extra[i0 + (k * n) // len(lst)].append(x)
    for i in range(28 - D): extra[i].append(loads[i + D])
    spread(uvf, 0, 2)
    spread([x for q, k in enumerate(kC) for x in w2_rd(k, 2 + q)], 2, 5)
    spread(stl, 2, 10)
    spread(p5a, 5, 12)
    spread(str_, 13, 15)
    spread(st, 16, 23)
    extra[15] += [Ctl("wait_tok", {"uv"}), "s_barrier"]
    e0, e1 = P["e0"], P["e1"]
    spread(epi4(0), 31, e0)
    extra[e0 + P['fl0']].append(flag_local(S_C, "h0"))
    kD = list(range(nA + nB + nC, len(todo)))
    free = [i for i in range(28 - D, P["w2end"]) if not (P["w2gap"] and 31 <= i < e0 and (i - 31) % P["w2gap"])]
    lag = P["w2lag"]
    for q, k in enumerate(kD):
        slot = (2 + q) % 5
        p0 = free[(2 * q * len(free)) // (2 * len(kD))]; p1 = free[((2 * q + 1) * len(free)) // (2 * len(kD))]
        r0 = p1 + lag
        if q + 5 < len(kD): r0 = min(r0, free[(2 * (q + 5) * len(free)) // (2 * len(kD))] - 2)
        d_ = w2_dma(k, slot); extra[p0].append(d_[0]); extra[p1].append(d_[1])
        spread(w2_rd(k, slot), r0, r0 + 2)
    c0 = P["c0"]
    assert e0 + P['fl0'] < c0 and e1 + P['fl1'] < P["c1"] <= 28
    extra[c0 - P['pl']].append(hp[0])
    extra[c0].append(check_ool([hp[0]], [VT + 1], VT + 5, True))
    D5 = P["look5"]
    for i in range(D5): extra[c0 + (i * (58 - c0)) // D5].append(ld5(i))
    c1 = P["c1"]
    pos5 = {}
    for i in range(D5, 56):
        p_ = i - D5
        if i >= 28: p_ = max(p_, c1 + (i - 28) // P["burst"])
        pos5.setdefault(p_, []).append(ld5(i))
        assert p_ < i
    for p_, l_ in pos5.items(): extra[58 + p_][0:0] = l_
    extra[58].append(f"s_add_u32 s{S_HB}, s{S_HB}, 4096")
    spread(epi4(1), 59, 58 + e1)
    extra[58 + e1 + P['fl1']].append(flag_local(S_C, "h1", 256))
    extra[58 + c1 - P["pl"]].append(hp[1])
    extra[58 + c1].insert(0, check_ool([hp[1]], [VT + 1], VT + 5, True))
    extra[58 + 26] += [Ctl("wait_lds"), "s_barrier", f"ds_read_b32 v{VT+8}, v{VB1}"]
    ra = []
    for aa in (1, 2, 3): ra += [f"s_xor_b32 s{T2}, s{S_W}, {aa}", f"s_mul_i32 s{T2}, s{T2}, 12288", f"v_add_u32 v{VT+4+aa}, s{T2}, v{VL16}"]
    ra += [f"s_mul_i32 s{T2}, s{S_W}, 12288", f"v_add_u32 v{VT+4}, s{T2}, v{VL16}"]
    VGR = 48
    for d in range(8):
        ra += [f"v_lshlrev_b32 v32, 16, v{VB2+d}", f"v_and_b32 v33, 0xffff0000, v{VB2+d}",
               f"v_lshlrev_b32 v{VGR+2*d}, 16, v{VGB+d}", f"v_and_b32 v{VGR+2*d+1}, 0xffff0000, v{VGB+d}",
               f"v_fmac_f32 v{VX1_+2*d}, v32, v{VGR+2*d}", f"v_fmac_f32 v{VX1_+2*d+1}, v33, v{VGR+2*d+1}",
               f"v_mul_f32 v{VGR+2*d}, v{VT+8}, v{VGR+2*d}", f"v_mul_f32 v{VGR+2*d+1}, v{VT+8}, v{VGR+2*d+1}"]
    spread(ra, 58 + 28, 58 + 43)
    def sub(acc, f):
        m_ = re.match(r"([va])\[(\d+):", acc); return f"{m_.group(1)}[{int(m_.group(2))+4*f}:{int(m_.group(2))+4*f+3}]"
    wr = lambda aa: [f"ds_write_b128 v{VT+4+aa}, {sub(VA5[aa], f)} offset:{(aa-1)*4096+1024*f}" for f in range(4)]
    spread(wr(1) + wr(3), 58 + 44, 58 + 47)
    extra[58 + 48] += [Ctl("wait_lds"), "s_barrier"]
    R1, R3, R2 = VY, VY + 16, VY + 32
    spread([f"ds_read_b128 {v(R1+4*f,4)}, v{VT+4} offset:{1024*f}" for f in range(4)] +
           [f"ds_read_b128 {v(R3+4*f,4)}, v{VT+4} offset:{8192+1024*f}" for f in range(4)], 58 + 48, 58 + 50)
    pre5 = [f"v_fmac_f32 v{VX1_+i}, v{R1+i}, v{VGR+i}" for i in range(16)] + [f"v_fmac_f32 v{VX1_+i}, v{R3+i}, v{VGR+i}" for i in range(16)]
    spread(pre5[:16], 58 + 50, 58 + 52)
    for i in range(58):
        mm = mf_seq(i); rd = rd_seq(i + 3) if i + 3 < 58 else []
        ex_ = extra[i]; h_ = (len(ex_) + 1) // 2
        a.add([Ctl("wait_regs", regs_of(ac(ring[i % 4], 8))), mm[0], ex_[:h_], rd[:2], mm[1], ex_[h_:], rd[2:]])
        if i == 28: stamp("p4h")
        stamp(f"p4_{i}")
    stamp("p4done")
    first = set()
    def m5(i, nt):
        late, jj, sl = steps[i]; aa = sl + 2 * nt; acc = VA5[aa]
        c_ = acc if aa in first else "0"; first.add(aa)
        return f"{MF} {acc}, {ac(w2reg(late,jj)+4*nt,4)}, {v(VY+4*(i % 28),4)}, {c_}"
    for i in range(52):
        ex_ = extra[58 + i]; h_ = (len(ex_) + 1) // 2
        a.add([m5(i, 1), ex_[:h_], m5(i, 0), ex_[h_:]])
        stamp(f"p5_{i}")
    a.add([m5(52, 1), m5(53, 1), m5(54, 1), m5(55, 1), pre5[16:21], m5(52, 0), pre5[21:26], m5(53, 0), wr(2), m5(54, 0), pre5[26:], m5(55, 0)])
    a.wait_lds()
    a("s_barrier")
    for f in range(4): a(f"ds_read_b128 {v(R2+4*f,4)}, v{VT+4} offset:{4096+1024*f}")
    stamp("p5done")
    b = 208
    for i in range(8): a(f"v_pk_fma_f32 {v(VX1_+2*i,2)}, {v(b+2*i,2)}, {v(VGR+2*i,2)}, {v(VX1_+2*i,2)}")
    for pr in range(2):
        R_ = range(4 * pr, 4 * pr + 4)
        for i in R_: a(f"v_pk_fma_f32 {v(VX1_+2*i,2)}, {v(R2+2*i,2)}, {v(VGR+2*i,2)}, {v(VX1_+2*i,2)}")
        for i in R_: a(f"v_cvt_pk_bf16_f32 v{160+i}, v{VX1_+2*i}, v{VX1_+2*i+1}")
        a(f"v_permlane32_swap_b32 v{160+4*pr}, v{162+4*pr}\nv_permlane32_swap_b32 v{161+4*pr}, v{163+4*pr}")
        a(f"buffer_store_dwordx4 {v(160+4*pr,4)}, v{VOUT}, {s(SOUT,4)}, 0 offen offset:{32*pr} {('', 'sc1', 'nt', 'sc1 nt')[P['out_sc1']]}")
    a("s_branch L_end")
    a.label("L_helper")
    a("s_waitcnt vmcnt(0) lgkmcnt(0)")
    a.add(flag_local(S_LW, "none"))
    a(f"s_mov_b32 s{SW2+2}, 1605632")
    if P["htouch"]:
        a(f"""
        s_and_b32 s{T1}, s{S_J}, 1
        s_lshl2_add_u32 s{T1}, s{T1}, s{S_W}
        s_and_b32 s{T2}, s{S_R}, 1
        s_lshl3_add_u32 s{T2}, s{T2}, s{T1}
        v_lshlrev_b32 v{VT}, 7, v0
        s_mul_i32 s{T2}, s{T2}, {128*896}
        s_add_u32 s{T2}, s{T2}, {64*896}
        s_mul_i32 s{T1}, s{T1}, 57344
        s_add_u32 s{T1}, s{T1}, s{S_GB}
        s_add_u32 s{T1}, s{T1}, {G_H}
        """)
        for e in range(7):
            if P["htouch"] & 1: a(f"buffer_load_dword v{VT+1}, v{VT}, {s(SW2,4)}, s{T2} offen\ns_add_u32 s{T2}, s{T2}, 8192")
        for e in range(7):
            if P["htouch"] & 2: a(f"buffer_load_dword v{VT+1}, v{VT}, {WS}, s{T1} offen sc1 {NTF}\ns_add_u32 s{T1}, s{T1}, 8192")
        a("s_waitcnt vmcnt(0)")
    a(f"s_cmp_lg_u32 s{S_W}, 0\ns_cbranch_scc1 L_end")
    if P["wb"]:
        a(f"s_cmp_lg_u32 s{S_J}, 14\ns_cbranch_scc1 L_help2")
        a(f"v_and_b32 v{VT}, 15, v0\nv_min_u32 v{VT}, 13, v{VT}\nv_and_b32 v{VT+1}, 48, v0\nv_add_lshl_u32 v{VT}, v{VT}, v{VT+1}, 2")
        for off in ((G_FY, G_FH, G_FH + 256) if P["wb"] == 1 else (G_FH + 256,)):
            a(f"s_add_u32 s{S_A}, s{S_GB}, {off}")
            poll(["s_sleep 4", f"buffer_load_dword v{VT+1}, v{VT}, {WS}, s{S_A} offen sc1"], [VT + 1], VT + 2)
            a("buffer_wbl2 sc1\ns_waitcnt vmcnt(0)")
        a("s_branch L_end")
        a.label("L_help2")
    a(f"s_cmp_lg_u32 s2, 255\ns_cbranch_scc1 L_end")
    a(f"v_lshlrev_b32 v{VT}, 7, v0\ns_mov_b32 s{S_A}, {WS_G0 + G_FKV}\ns_mov_b32 s{S_B}, 0")
    a.label("L_eloop")
    poll([f"buffer_load_dword v{VT+1}, v{VT}, {WS}, s{S_A} offen sc1"], [VT + 1], VT + 2)
    a(f"s_add_u32 s{S_A}, s{S_A}, {WS_GS}\ns_add_u32 s{S_B}, s{S_B}, 1\ns_cmp_lt_u32 s{S_B}, 16\ns_cbranch_scc1 L_eloop")
    a(f"s_mov_b64 exec, 1\nbuffer_store_dword v{VTAG}, off, {WS}, 0 offset:{WS_E} sc1")
    a.label("L_end")
    if padat == "end": a("s_waitcnt vmcnt(0)"); stamp("end")
    if diag:
        a("s_mov_b64 exec, -1\ns_waitcnt vmcnt(0) lgkmcnt(0)")
        a(f"{'s_memtime' if diag == 2 else 's_memrealtime'} s[{T1}:{T2}]")
        a(f"s_lshl2_add_u32 s{T0}, s2, s{S_W}\ns_lshl_b32 s{T0}, s{T0}, 7\nv_mov_b32 v1, {WS_DIAG}\ns_mov_b64 exec, 1")
        for i in range(NSTAMP):
            a(f"v_mov_b32 v2, s{S_STAMP+2*i}\nbuffer_store_dword v2, v1, {WS}, s{T0} offen offset:{4*i}")
        a(f"v_mov_b32 v2, s{T1}\nbuffer_store_dword v2, v1, {WS}, s{T0} offen offset:64")
        a(f"v_mov_b32 v2, s{S_SLOW}\nbuffer_store_dword v2, v1, {WS}, s{T0} offen offset:68")
    a.label("L_exit")
    a("s_endpgm")
    a.ool.append("L_codeend:\n")
    body = a.finalize()
    k = kernel_text(KNAME + "_kernel", body, vgpr=256, agpr=256)
    hdr = "; fused adaLN + sliding-window attention + squared-ReLU FFN, one persistent launch (generated by gen/k6.py)\n"
    return file_text([f"; @launch grid=(256,1,1) block=(256,1,1) lds={LDS_BYTES}"], [k], hdr), a

SETS = [["start", "issued", "modpub", "modpoll", "modgot", "hflag", "hgot", "kvdone", "kvflag", "kvpoll", "kvgot", "qdone"],
        ["start", "kvgot", "p2", "ost", "oflag", "ogot", "yst", "yflag", "ygot", "p4h", "p4done"],
        ["start", "ygot", "p4_10", "p4_21", "p4_28", "p4_33", "p4_38", "p4_45", "p4_50", "p4_54", "p4done"],
        ["start", "p4done", "p5_5", "p5_10", "p5_16", "p5_21", "p5_22", "p5_27", "p5_35", "p5_44", "p5_51", "p5done"],
        ["start", "karg", "wmiss", "issued", "cgot", "silu", "wmgot", "mfma", "mbar", "xgot", "modpub", "ln1"]]
if __name__ == "__main__":
    txt, a = gen(); open("k6.s", "w").write(txt)
    from collections import Counter
    print(Counter(x.kind for x in a.final), len(txt))
```

```python
import k6
base = k6.gen(wgp=0, p2x=2)[0]
K = "adaLN_cond__sliding_block__dense_activation_squared_relu__prompt_kernel:\n"
def with_probe(karg, size, off, mode):
    p = f"""  s_cmp_ge_u32 s2, 256
  s_cbranch_scc1 L_exit
  s_load_dwordx2 s[80:81], s[0:1], {karg}
  s_mov_b32 s82, {size}
  s_mov_b32 s83, 0x20000
  s_waitcnt lgkmcnt(0)
"""
    if mode == "serial":
        p += f"  v_lshrrev_b32 v1, 6, v0\n  v_lshlrev_b32 v1, 10, v1\n  s_lshl_b32 s84, s2, 12\n  s_add_u32 s84, s84, {off}\n"
        for r in range(4):
            for i in range(8):
                pass
        p = p.replace("v_lshlrev_b32 v1, 10, v1", "v_mov_b32 v1, 0")
        for i in range(32): p += f"  buffer_load_dword v2, v1, s[80:83], s84 offen offset:{128*i}\n  s_waitcnt vmcnt(0)\n"
    else:
        p += f"  v_lshlrev_b32 v1, 4, v0\n  s_lshl_b32 s84, s2, 17\n  s_add_u32 s84, s84, {off}\n"
        for i in range(32): p += f"  buffer_load_dwordx4 v[4:7], v1, s[80:83], s84 offen {mode}\n  s_add_u32 s84, s84, 4096\n"
        p += "  s_waitcnt vmcnt(0)\n"
    return base.replace(K, K + p)
V = dict(a=(24, 1835008, 0, "serial"), b=(96, 0x10000000, 64 << 20, "serial"), c=(96, 0x10000000, 250 << 20, "serial"),
         d=(96, 0x10000000, 64 << 20, ""), e=(96, 0x10000000, 64 << 20, "nt"), f=(96, 0x10000000, 220 << 20, ""), g=(80, 1835008, 0, "serial"), h=(96, 0x10000000, 20 << 20, "serial"))
for k, v in V.items(): open(f"pr_{k}.s", "w").write(with_probe(*v))
open("pr_0.s", "w").write(base)
```
